```python
import torch

def _softmax(x, axis=-1):
    return torch.softmax(x, dim=axis)

def _gelu(x):
    return torch.nn.functional.gelu(x, approximate='tanh')

def _silu(x):
    return torch.nn.functional.silu(x)

def _sigmoid(x):
    return torch.sigmoid(x)

def _layernorm(x, axis=-1, eps=1e-05):
    m = x.mean(dim=axis, keepdim=True)
    v = x.var(dim=axis, keepdim=True, unbiased=False)
    return (x - m) / torch.sqrt(v + eps)

def _scatter_add(tgt, idx, src, axis=0):
    return tgt.clone().index_add_(axis, idx, src)

def _segment_sum(src, seg, n):
    out = torch.zeros((n,) + src.shape[1:], dtype=src.dtype)
    return out.index_add_(0, seg, src)

def _pad(x, pw):
    flat = tuple((v for pair in reversed(pw) for v in pair))
    return torch.nn.functional.pad(x, flat)
kernel_name = 'adaLN_cond__gqa_block_cached__geglu_ffn__decode'

def setup_inputs():

    _w = lambda a: (lambda t: t.to(torch.bfloat16) if t.is_floating_point() else t)(torch.as_tensor(a))

    def _A_setup():
        B, Sq, D = (4, 1, 640)
        Hq, Hkv, Sk, Dh = (32, 32, 4096, 192)
        assert Hq % Hkv == 0, (Hq, Hkv)
        return {'x': _w((lambda *s: torch.randn(*s, dtype=torch.bfloat16) * 0.05)(B, Sq, D)), 'k_cache': _w((lambda *s: torch.randn(*s, dtype=torch.bfloat16) * 3.2)(B, Hkv, Sk, Dh)), 'v_cache': _w((lambda *s: torch.randn(*s, dtype=torch.bfloat16) * 0.4)(B, Hkv, Sk, Dh)), 'wq': _w((lambda *s: torch.randn(*s, dtype=torch.bfloat16) * 3.2)(D, Hq * Dh) * D ** (-0.5)), 'wo': _w((lambda *s: torch.randn(*s, dtype=torch.bfloat16) * 0.4)(Hq * Dh, D) * (Hq * Dh) ** (-0.5))}
    _A_in = _A_setup()

    def _B_setup():
        B, S, D, F = (4, 1, 640, 1536)
        return {'x': _w((lambda *s: torch.randn(*s, dtype=torch.bfloat16) * 0.05)(B, S, D)), 'w_gate': _w((lambda *s: torch.randn(*s, dtype=torch.bfloat16) * 0.05)(D, F)), 'w_up': _w((lambda *s: torch.randn(*s, dtype=torch.bfloat16) * 0.05)(D, F)), 'w_down': _w((lambda *s: torch.randn(*s, dtype=torch.bfloat16) * 0.05)(F, D))}
    _B_in = _B_setup()
    return {'A_x': _A_in['x'], 'A_k_cache': _A_in['k_cache'], 'A_v_cache': _A_in['v_cache'], 'A_wq': _A_in['wq'], 'A_wo': _A_in['wo'], 'B_x': _B_in['x'], 'B_w_gate': _B_in['w_gate'], 'B_w_up': _B_in['w_up'], 'B_w_down': _B_in['w_down'], 'c': _w((lambda *s: torch.randn(*s, dtype=torch.bfloat16) * 0.1)(4, 640) * 8.0), 'w_mod': _w((lambda *s: torch.randn(*s, dtype=torch.bfloat16) * 0.1)(640, 6 * 640) * 640 ** (-0.5) * 8.0)}

def reference(A_x, A_k_cache, A_v_cache, A_wq, A_wo, B_x, B_w_gate, B_w_up, B_w_down, c, w_mod):

    def _A_ref(x, k_cache, v_cache, wq, wo):
        B, Sq, D = x.shape
        Hq, Dh = (32, 192)
        Hkv = k_cache.shape[1]
        rep = Hq // Hkv
        q = (lambda x, *d: x.permute(*d))((x @ wq).reshape(B, Sq, Hq, Dh), 0, 2, 1, 3)
        k = (lambda x, n, axis: torch.repeat_interleave(x, n, dim=axis))(k_cache, rep, axis=1)
        v = (lambda x, n, axis: torch.repeat_interleave(x, n, dim=axis))(v_cache, rep, axis=1)
        scores = torch.einsum('bhqd,bhkd->bhqk', q, k) * Dh ** (-0.5)
        p = _softmax(scores, axis=-1)
        o = torch.einsum('bhqk,bhkd->bhqd', p, v)
        return (lambda x, *d: x.permute(*d))(o, 0, 2, 1, 3).reshape(B, Sq, Hq * Dh) @ wo

    def _B_ref(x, w_gate, w_up, w_down):
        return _gelu(x @ w_gate) * (x @ w_up) @ w_down
    x = A_x
    mod = (_silu(c) @ w_mod).reshape(c.shape[0], 6, 1, -1)
    sa, ca, ga, sb, cb, gb = (mod[:, 0].clone(), mod[:, 1].clone(), mod[:, 2].clone(), mod[:, 3].clone(), mod[:, 4].clone(), mod[:, 5].clone())
    h = _layernorm(x, axis=-1) * (1 + ca) + sa
    x = x + ga * _A_ref(h, A_k_cache, A_v_cache, A_wq, A_wo)
    h = _layernorm(x, axis=-1) * (1 + cb) + sb
    x = x + gb * _B_ref(h, B_w_gate, B_w_up, B_w_down)
    return x
```

```python
import re
TRANS = ('v_exp_f32','v_log_f32','v_rcp_f32','v_rsq_f32','v_sqrt_f32','v_sin_f32','v_cos_f32')
def regs(tok):
    tok=tok.strip()
    tok=tok.lstrip('-')
    if tok.startswith('abs(') or tok.startswith('|'):
        tok=tok.replace('abs(','').replace(')','').replace('|','')
    m=re.fullmatch(r'([vsa])(\d+)',tok)
    if m: return [(m.group(1),int(m.group(2)))]
    m=re.fullmatch(r'([vsa])\[(\d+):(\d+)\]',tok)
    if m: return [(m.group(1),i) for i in range(int(m.group(2)),int(m.group(3))+1)]
    if tok=='vcc': return [('s','vcc')]
    if tok=='exec': return [('s','exec')]
    if tok=='m0': return [('s','m0')]
    return []
class Ins:
    def __init__(s,text):
        s.text=text
        t=text.split(';')[0].strip()
        s.label = t.endswith(':')
        s.empty = (t=='' or t.startswith('.'))
        s.op=''; s.rd=set(); s.wr=set(); s.kind=''
        if s.label or s.empty: return
        parts=t.split(None,1); s.op=parts[0]
        rest=parts[1] if len(parts)>1 else ''
        ops=[o.strip() for o in re.split(r',(?![^\[]*\])',rest)] if rest else []
        mods=''
        if ops:
            last=ops[-1].split(None,1); ops[-1]=last[0]; mods=last[1] if len(last)>1 else ''
        s.mods=mods; s.ops=ops
        op=s.op
        R=lambda i: set(regs(ops[i])) if i<len(ops) else set()
        allfrom=lambda i: set().union(*[R(k) for k in range(i,len(ops))]) if i<len(ops) else set()
        s.dpp = ('dpp' in op) or ('quad_perm' in mods or 'row_' in mods)
        if op.startswith('v_mfma'):
            s.kind='mfma'; s.wr=R(0); s.rd=allfrom(1); s.ab=R(1)|R(2); s.c=R(3)
        elif op.startswith('v_'):
            s.kind='valu'
            if op.startswith('v_permlane'):
                s.wr=R(0)|R(1); s.rd=R(0)|R(1)
            elif op.startswith('v_cmp'):
                s.wr=R(0); s.rd=allfrom(1)
            else:
                s.wr=R(0); s.rd=allfrom(1)
                if op.startswith(('v_fmac','v_dot2c','v_writelane')): s.rd|=R(0)
                if s.dpp: s.rd|=R(0)
                if op.startswith('v_cndmask') and len(ops)==3: s.rd|={('s','vcc')}
                if op.startswith(('v_add_co','v_sub_co','v_addc_co')): s.wr|=R(1)
        elif op.startswith('ds_'):
            s.kind='ds'
            if op.startswith('ds_read') or '_rtn' in op or 'permute' in op or 'swizzle' in op:
                s.wr=R(0); s.rd=allfrom(1)
            else: s.rd=allfrom(0)
        elif op.startswith(('buffer_','global_')):
            s.kind='vmem'
            s.lds = bool(re.search(r'\blds\b',mods))
            if 'store' in op or ('atomic' in op): s.rd=allfrom(0); s.store=True
            elif s.lds: s.rd=allfrom(0)|{('s','m0')}; s.store=False
            else: s.wr=R(0); s.rd=allfrom(1); s.store=False
        elif op.startswith('s_'):
            s.kind='salu'
            if op.startswith(('s_cmp','s_waitcnt','s_nop','s_branch','s_cbranch','s_barrier','s_sleep','s_endpgm','s_setprio')):
                s.rd=allfrom(0)
            else:
                s.wr=R(0); s.rd=allfrom(1)
                if 'saveexec' in op: s.wr|={('s','exec')}
    def states(s):
        if s.label or s.empty: return 0
        if s.op=='s_nop': return int(s.ops[0])+1
        return 1
def V(st): return {r for r in st if r[0] in 'va'}
def S(st): return {r for r in st if r[0]=='s'}
def need(p,c):
    n=0
    if p.kind=='valu':
        pv=V(p.wr); ps=S(p.wr)
        if c.kind=='valu':
            if c.dpp and pv&V(c.rd): n=max(n,2)
            if c.op.startswith('v_permlane') and pv&V(c.rd): n=max(n,2)
            if c.op.startswith(('v_readlane','v_readfirstlane')) and pv&V(c.rd): n=max(n,1)
            if p.op.startswith(TRANS) and pv&V(c.rd): n=max(n,1)
            if p.op.startswith('v_dot'):
                if pv&(V(c.rd)|V(c.wr)):
                    same = (p.op==c.op)
                    if same:
                        ab=set(regs(c.ops[1]))|set(regs(c.ops[2]))
                        if pv&ab: n=max(n,3)
                    else: n=max(n,3)
            if ps&S(c.rd): n=max(n,2)
            if ('s','exec') in ps: n=max(n,5 if c.dpp else 4)
        if c.kind=='mfma':
            if pv&V(c.rd): n=max(n,3 if p.op.startswith('v_dot') else 2)
            if ('s','exec') in ps: n=max(n,4)
        if c.kind in ('vmem','ds'):
            if ps&S(c.rd): n=max(n,5)
            if p.op.startswith('v_dot') and pv&V(c.rd): n=max(n,3)
            if p.op.startswith(TRANS) and pv&V(c.rd): n=max(n,1)
        if c.kind=='salu':
            if ps&S(c.rd): n=max(n,1)
    if p.kind=='mfma':
        passes = 8 if '32x32' in p.op else 4
        full = {4:8,8:12}[passes]; ovl={4:6,8:10}[passes]; war={4:3,8:7}[passes]
        if c.kind=='mfma':
            if p.wr&c.ab: n=max(n,full)
            if p.wr&c.c and p.wr!=c.c: n=max(n,ovl)
            if p.wr&c.c and p.wr==c.c and p.op!=c.op: n=max(n,ovl)
            if p.wr&c.wr and not (p.wr&c.c): n=max(n,full)
        elif c.kind in ('valu','vmem','ds'):
            if p.wr&(V(c.rd)|V(c.wr)): n=max(n,full)
            if c.kind=='valu' and p.c&V(c.wr): n=max(n,war)
    if p.kind=='vmem' and getattr(p,'store',False):
        if re.search(r'x[34]',p.op) and c.kind in('valu','mfma') and set(regs(p.ops[0]))&V(c.wr): n=max(n,2)
        if re.search(r'x[34]',p.op) and c.kind in('vmem','ds') and set(regs(p.ops[0]))&V(c.wr): n=max(n,1)
    if p.kind=='ds' and p.op.startswith(('ds_write_b128','ds_write_b96')):
        if c.kind in('valu','mfma') and V(p.rd)&V(c.wr): n=max(n,2)
    if p.kind=='salu':
        if ('s','m0') in p.wr and c.kind=='vmem' and getattr(c,'lds',False): n=max(n,1)
    return n
class Asm:
    def __init__(s): s.L=[]; s.pads=0
    def __call__(s,text):
        for line in text.split('\n'):
            if line.strip()=='' : continue
            s.emit(line.strip())
    def emit(s,text):
        c=Ins(text)
        if not (c.label or c.empty):
            dist=0; pad=0
            for p in reversed(s.L):
                if dist>=14: break
                if p.op in ('s_branch','s_endpgm'): break
                if not (p.label or p.empty):
                    n=need(p,c)
                    if n>dist: pad=max(pad,n-dist)
                dist+=p.states()
            if pad>0:
                s.L.append(Ins(f's_nop {pad-1}')); s.pads+=1
        s.L.append(c)
    def text(s):
        out=[]
        for i in s.L:
            if i.label or i.text.strip().startswith('.'): out.append(i.text)
            else: out.append('    '+i.text)
        return '\n'.join(out)+'\n'
```

```python
import sys, struct
from asmlib import Asm
NAME='adaLN_cond__gqa_block_cached__geglu_ffn__decode'
def fhex(f): return '0x%08x'%struct.unpack('<I',struct.pack('<f',f))[0]
LOG2E=1.4426950408889634
SCALE=192**-0.5
WS_H=0x1000; WS_MOD=0x4000; WS_X1=0xE000; WS_OP=0x20000; WS_WR=0x60000; WS_QP=0x100000; WS_DF=0x280000; WS_TS=0x500000; WS_SIZE=0x600000
L_WQ=0x0; L_WO=0x7800; L_U0=0xF000; L_U1=0x14000; L_U2=0x19000; L_SC5=0x1E000; L_SC6=0x1F400; L_OP=0x20800; L_GR=0x22000; L_Q=0x24000; L_ML=0x24200; L_FL=0x24240; LDS_BYTES=0x24300
F_CNT=0; F_Q=4; F_WO=8; F_G=12
TIMEOUT=1<<21

class G:
    def __init__(s, D=9, TS=False, DAUX=4, ntw='nt'):
        s.a=Asm(); s.D=D; s.TS=TS; s.DAUX=DAUX; s.ntw=ntw; s.uid=0
    def lab(s,p):
        s.uid+=1; return f'L_{p}_{s.uid}'
    def ts(s,i):
        if s.TS: s.a(f's_memrealtime s[{80+2*i}:{81+2*i}]')
    def ts_flush(s):
        a=s.a
        if not s.TS: return
        a('s_waitcnt lgkmcnt(0)')
        a('s_lshl_b32 s7, s2, 3'); a('s_add_u32 s7, s7, s3'); a('s_lshl_b32 s7, s7, 7'); a(f's_add_u32 s7, s7, {WS_TS}')
        a('s_mov_b64 exec, 1')
        a('v_mov_b32 v1, 0')
        for i in range(0,11):
            a(f'v_mov_b32 v2, s{80+2*i}'); a(f'v_mov_b32 v3, s{81+2*i}')
            a(f'buffer_store_dwordx2 v[2:3], v1, s[44:47], s7 offen offset:{8*i}')
        a('s_getreg_b32 s56, hwreg(HW_REG_XCC_ID)'); a('v_mov_b32 v2, s56')
        a('buffer_store_dword v2, v1, s[44:47], s7 offen offset:88')
    def end(s):
        s.ts(10); s.ts_flush(); s.a('s_endpgm')
    def srd(s, d, ptr, off_sgpr, size):
        a=s.a
        if off_sgpr is None:
            a(f's_mov_b32 s{d}, s{ptr}'); a(f's_mov_b32 s{d+1}, s{ptr+1}')
        else:
            a(f's_add_u32 s{d}, s{ptr}, s{off_sgpr}'); a(f's_addc_u32 s{d+1}, s{ptr+1}, 0')
        a(f's_mov_b32 s{d+2}, {size}'); a(f's_mov_b32 s{d+3}, 0x20000')
    def timeout(s, loop, sleep):
        a=s.a
        a('s_sub_u32 s52, s52, 1'); a('s_cbranch_scc1 L_timeout')
        if sleep: a(f's_sleep {sleep}')
        a(f's_branch {loop}')
    def lds_wait(s, off, cmpop, val, sleep, vt=15):
        a=s.a; lp=s.lab('lw'); dn=s.lab('lwd')
        a(f'{lp}:')
        a(f'ds_read_b32 v{vt}, v14 offset:{off}'); a('s_waitcnt lgkmcnt(0)')
        a(f'v_readfirstlane_b32 s7, v{vt}'); a(f's_cmp_{cmpop}_u32 s7, {val}'); a(f's_cbranch_scc1 {dn}')
        s.timeout(lp,sleep); a(f'{dn}:')
    def lds_inc(s, off):
        a=s.a
        a('s_mov_b64 exec, 1'); a('v_mov_b32 v15, 1'); a(f'ds_add_u32 v14, v15 offset:{off}'); a('s_mov_b64 exec, -1')
    def gather_masked(s, loads, tagpos, init, sleep):
        a=s.a; lp=s.lab('gm'); dn=s.lab('gmd'); assert len(loads)<=10
        lo,hi=init&0xffffffff, init>>32
        for k in range(len(loads)):
            a(f's_mov_b32 s{60+2*k}, 0x{lo:x}'); a(f's_mov_b32 s{61+2*k}, 0x{hi:x}')
        a(f'{lp}:')
        for k,(d,n,vo,so,im) in enumerate(loads):
            a(f's_mov_b64 exec, s[{60+2*k}:{61+2*k}]')
            a(f'buffer_load_dwordx{n} v[{d}:{d+n-1}], v{vo}, s[44:47], {so} offen offset:{im} sc1')
        for k,(d,n,vo,so,im) in enumerate(loads):
            a(f's_waitcnt vmcnt({len(loads)-1-k})')
            a(f's_mov_b64 exec, s[{60+2*k}:{61+2*k}]')
            a(f'v_cmp_ne_u32 s[{60+2*k}:{61+2*k}], s4, v{d+tagpos}')
        a('s_mov_b64 exec, -1')
        if len(loads)==1: a('s_or_b64 s[58:59], s[60:61], s[60:61]')
        else:
            a('s_or_b64 s[58:59], s[60:61], s[62:63]')
            for k in range(2,len(loads)): a(f's_or_b64 s[58:59], s[58:59], s[{60+2*k}:{61+2*k}]')
        a(f's_cbranch_scc0 {dn}')
        s.timeout(lp,sleep); a(f'{dn}:')
    def gather_full(s, loads, tagpos, sleep, t0=12, t1=13):
        a=s.a; lp=s.lab('gf'); dn=s.lab('gfd')
        a(f'{lp}:')
        for k,(d,n,vo,so,im) in enumerate(loads):
            a(f'buffer_load_dwordx{n} v[{d}:{d+n-1}], v{vo}, s[44:47], {so} offen offset:{im} sc1')
        tg=[d+tagpos for (d,n,vo,so,im) in loads]; n=len(tg)
        a(f's_waitcnt vmcnt({n-2})')
        a(f'v_min_u32 v{t0}, v{tg[0]}, v{tg[1]}'); a(f'v_max_u32 v{t1}, v{tg[0]}, v{tg[1]}')
        k=2
        while k<n:
            if k+1<n:
                a(f's_waitcnt vmcnt({n-2-k})')
                a(f'v_min3_u32 v{t0}, v{t0}, v{tg[k]}, v{tg[k+1]}'); a(f'v_max3_u32 v{t1}, v{t1}, v{tg[k]}, v{tg[k+1]}'); k+=2
            else:
                a('s_waitcnt vmcnt(0)')
                a(f'v_min_u32 v{t0}, v{t0}, v{tg[k]}'); a(f'v_max_u32 v{t1}, v{t1}, v{tg[k]}'); k+=1
        a(f'v_cmp_ne_u32 s[58:59], s4, v{t0}'); a(f'v_cmp_ne_u32 vcc, s4, v{t1}')
        a('s_or_b64 s[58:59], s[58:59], vcc'); a(f's_cbranch_scc0 {dn}')
        s.timeout(lp,sleep); a(f'{dn}:')
    def dma(s, srd, voffs, n, sofn, lds, pace=None):
        a=s.a; last=None
        for p in range(n):
            so=sofn(p)
            if pace is not None and p>=pace: a(f's_waitcnt vmcnt({pace-1})')
            if so!=last: a(f's_mov_b32 s57, {so}'); last=so
            a(f's_mov_b32 m0, {lds+p*1024}')
            a(f'buffer_load_dwordx4 v{voffs[p%len(voffs)]}, s[{srd}:{srd+3}], s57 offen {s.ntw} lds')
    def unpack(s, p, lo, hi):
        s.a(f'v_lshlrev_b32 v{lo}, 16, v{p}'); s.a(f'v_and_b32 v{hi}, s53, v{p}')
    def ln_stats(s, dw, t):
        a=s.a; S0,S1,Q0,Q1=t,t+1,t+2,t+3
        for i,d in enumerate(dw):
            S=(S0,S1)[i&1]; Q=(Q0,Q1)[i&1]
            a(f'v_dot2_f32_bf16 v{S}, v{d}, s26, {"0" if i<2 else "v%d"%S}')
            a(f'v_dot2_f32_bf16 v{Q}, v{d}, v{d}, {"0" if i<2 else "v%d"%Q}')
        a(f'v_add_f32 v{S0}, v{S0}, v{S1}'); a(f'v_add_f32 v{Q0}, v{Q0}, v{Q1}')
        for r in (4,8):
            a(f'v_add_f32_dpp v{S0}, v{S0}, v{S0} row_ror:{r} row_mask:0xf bank_mask:0xf')
            a(f'v_add_f32_dpp v{Q0}, v{Q0}, v{Q0} row_ror:{r} row_mask:0xf bank_mask:0xf')
        a(f'v_permlane16_swap_b32 v{S0}, v{Q0}'); a(f'v_add_f32 v{S0}, v{S0}, v{Q0}')
        a(f'v_mov_b32 v{Q0}, v{S0}'); a(f'v_permlane32_swap_b32 v{S0}, v{Q0}'); a(f'v_add_f32 v{S0}, v{S0}, v{Q0}')
        a(f'v_mov_b32 v{Q0}, v{S0}'); a(f'v_permlane16_swap_b32 v{S0}, v{Q0}')
        nmu,rs=t+4,t+6
        a(f'v_mul_f32 v{S0}, {fhex(-1/640)}, v{S0}'); a(f'v_mul_f32 v{Q0}, {fhex(1/640)}, v{Q0}')
        a(f'v_fma_f32 v{Q0}, -v{S0}, v{S0}, v{Q0}'); a(f'v_max_f32 v{Q0}, 0, v{Q0}')
        a(f'v_cvt_pk_bf16_f32 v{S1}, v{S0}, v{Q0}'); s.unpack(S1,nmu,Q0)
        a(f'v_add_f32 v{Q0}, {fhex(1e-5)}, v{Q0}'); a(f'v_cvt_pk_bf16_f32 v{Q0}, v{Q0}, v{Q0}'); a(f'v_and_b32 v{Q0}, s53, v{Q0}')
        a(f'v_sqrt_f32 v{Q0}, v{Q0}'); a(f'v_cvt_pk_bf16_f32 v{Q0}, v{Q0}, v{Q0}'); a(f'v_and_b32 v{Q0}, s53, v{Q0}')
        a(f'v_rcp_f32 v{rs}, v{Q0}')
        return nmu,rs
    def ln_apply(s, d0, d1, nmu, rs, c1, sh, o0, o1, x):
        a=s.a
        def rnd(last=False):
            a(f'v_cvt_pk_bf16_f32 v{o0}, v{x}, v{x+1}'); a(f'v_cvt_pk_bf16_f32 v{o1}, v{x+2}, v{x+3}')
            if not last: s.unpack(o0,x,x+1); s.unpack(o1,x+2,x+3)
        s.unpack(d0,x,x+1); s.unpack(d1,x+2,x+3)
        for h in (0,2): a(f'v_pk_add_f32 v[{x+h}:{x+h+1}], v[{x+h}:{x+h+1}], v[{nmu}:{nmu+1}] op_sel_hi:[1,0]')
        rnd()
        for h in (0,2): a(f'v_pk_mul_f32 v[{x+h}:{x+h+1}], v[{x+h}:{x+h+1}], v[{rs}:{rs+1}] op_sel_hi:[1,0]')
        rnd()
        for h in (0,2): a(f'v_pk_mul_f32 v[{x+h}:{x+h+1}], v[{x+h}:{x+h+1}], v[{c1+h}:{c1+h+1}]')
        rnd()
        for h in (0,2): a(f'v_pk_add_f32 v[{x+h}:{x+h+1}], v[{x+h}:{x+h+1}], v[{sh+h}:{sh+h+1}]')
        rnd(True)
    def one_plus(s, p0, p1, o):
        a=s.a
        s.unpack(p0,o,o+1); s.unpack(p1,o+2,o+3)
        for i in range(4): a(f'v_add_f32 v{o+i}, 1.0, v{o+i}')
        a(f'v_cvt_pk_bf16_f32 v{p0}, v{o}, v{o+1}'); a(f'v_cvt_pk_bf16_f32 v{p1}, v{o+2}, v{o+3}')
        s.unpack(p0,o,o+1); s.unpack(p1,o+2,o+3)
    def red8_pair(s, a0, a1, t):
        a=s.a
        a(f'v_add_f32_dpp v{a0}, v{a0}, v{a0} row_ror:8 row_mask:0xf bank_mask:0xf')
        a(f'v_add_f32_dpp v{a1}, v{a1}, v{a1} row_ror:8 row_mask:0xf bank_mask:0xf')
        a(f'v_permlane16_swap_b32 v{a0}, v{a1}'); a(f'v_add_f32 v{a0}, v{a0}, v{a1}')
        a(f'v_mov_b32 v{t}, v{a0}'); a(f'v_permlane32_swap_b32 v{a0}, v{t}'); a(f'v_add_f32 v{a0}, v{a0}, v{t}')
    def rnd1(s, r):
        s.a(f'v_cvt_pk_bf16_f32 v{r}, v{r}, v{r}'); s.a(f'v_and_b32 v{r}, s53, v{r}')

    def stream(s):
        a=s.a; D=s.D
        KB=64; VB=160; Q=16; ACC=28; SC=40; MK=48; AT=(52,56); vM=60; vL=61; vO=62
        a('L_stream:')
        a('s_lshr_b32 s7, s6, 1'); a('s_lshl_b32 s7, s7, 5'); a('s_add_u32 s7, s7, s5'); a('s_mul_i32 s7, s7, 1572864')
        a('s_and_b32 s56, s6, 1'); a('s_lshl_b32 s56, s56, 2'); a('s_add_u32 s56, s56, s3'); a('s_mul_i32 s56, s56, 196608'); a('s_add_u32 s7, s7, s56')
        s.srd(8,18,7,196608); s.srd(12,20,7,196608)
        a(f'v_lshrrev_b32 v2, 3, v1'); a(f'v_mul_u32_u24 v{vO}, 384, v2'); a('v_and_b32 v3, 7, v1'); a(f'v_lshl_add_u32 v{vO}, v3, 4, v{vO}')
        a('s_mov_b32 s56, 0'); a('s_mov_b32 s57, 0')
        def issue(kv, gi, pace=True):
            base=(KB,VB)[kv]+12*gi; srd=('s[8:11]','s[12:15]')[kv]; so=('s56','s57')[kv]
            if pace: a(f's_waitcnt vmcnt({D-3})')
            for jj in range(3):
                a(f'buffer_load_dwordx4 v[{base+4*jj}:{base+4*jj+3}], v{vO}, {srd}, {so} offen offset:{(gi&1)*3072+jj*128} nt')
            if gi&1: a(f's_add_u32 {so}, {so}, 6144')
        n=0
        for kv in (0,1):
            for gi in range(8):
                issue(kv,gi,pace=(n>=D)); n+=3
                if n==D:
                    a('s_waitcnt lgkmcnt(0)'); a('s_add_u32 s4, s4, 1')
                    sk=s.lab('nf'); a('s_cmp_lg_u32 s3, 0'); a(f's_cbranch_scc1 {sk}')
                    for i in range(4,8): a(f'v_mov_b32 v{i}, 0')
                    a('ds_write_b128 v14, v[4:7]'); a('s_waitcnt lgkmcnt(0)')
                    a(f'{sk}:'); a('s_barrier')
                    a('v_and_b32 v4, 1, v1'); a('v_cmp_eq_u32 vcc, 1, v4'); a('v_mov_b32 v5, 0xffff'); a('v_mov_b32 v6, s53')
                    a('v_cndmask_b32 v5, v5, v6, vcc'); a('v_lshrrev_b32 v4, 1, v3')
                    for w in range(4):
                        a(f'v_cmp_eq_u32 vcc, {w}, v4'); a(f'v_cndmask_b32 v{MK+w}, 0, v5, vcc')
                    for i in range(12): a(f'v_mov_b32 v{ACC+i}, 0')
                    a(f'v_mov_b32 v{vM}, {fhex(-1e30)}'); a(f'v_mov_b32 v{vL}, 0')
        s.ts(1)
        s.lds_wait(F_Q,'lg',0,1)
        a(f'v_lshlrev_b32 v4, 4, v3'); a(f'v_add_u32 v4, {L_Q}, v4')
        for jj in range(3): a(f'ds_read_b128 v[{Q+4*jj}:{Q+4*jj+3}], v4 offset:{128*jj}')
        a('s_waitcnt lgkmcnt(0)')
        s.ts(2)
        def tile(last):
            for g2 in range(0,8,2):
                for i in range(12):
                    for gi in (g2,g2+1):
                        a(f'v_dot2_f32_bf16 v{SC+gi}, v{KB+12*gi+i}, v{Q+i}, {"0" if i==0 else "v%d"%(SC+gi)}')
                if not last: issue(0,g2); issue(0,g2+1)
            for m in ('quad_perm:[1,0,3,2]','quad_perm:[2,3,0,1]','row_half_mirror'):
                for gi in range(8): a(f'v_add_f32_dpp v{SC+gi}, v{SC+gi}, v{SC+gi} {m} row_mask:0xf bank_mask:0xf')
            for g2 in range(0,8,2): a(f'v_cvt_pk_bf16_f32 v{4+g2//2}, v{SC+g2}, v{SC+g2+1}')
            for g2 in range(0,8,2): s.unpack(4+g2//2,SC+g2,SC+g2+1)
            for gi in range(8): a(f'v_mul_f32 v{SC+gi}, s54, v{SC+gi}')
            for g2 in range(0,8,2): a(f'v_cvt_pk_bf16_f32 v{4+g2//2}, v{SC+g2}, v{SC+g2+1}')
            for g2 in range(0,8,2): s.unpack(4+g2//2,SC+g2,SC+g2+1)
            a(f'v_max3_f32 v4, v{SC}, v{SC+1}, v{SC+2}'); a(f'v_max3_f32 v5, v{SC+3}, v{SC+4}, v{SC+5}')
            a(f'v_max3_f32 v4, v4, v{SC+6}, v{SC+7}'); a('v_max_f32 v4, v4, v5')
            a('v_max_f32_dpp v4, v4, v4 row_ror:8 row_mask:0xf bank_mask:0xf')
            a('v_mov_b32 v5, v4'); a('v_permlane16_swap_b32 v4, v5'); a('v_max_f32 v4, v4, v5')
            a('v_mov_b32 v5, v4'); a('v_permlane32_swap_b32 v4, v5'); a('v_max_f32 v4, v4, v5')
            a('v_mul_f32 v4, s55, v4'); a(f'v_max_f32 v4, v4, v{vM}')
            a(f'v_sub_f32 v5, v{vM}, v4'); a('v_exp_f32 v5, v5'); a(f'v_mov_b32 v{vM}, v4')
            for gi in range(8): a(f'v_fma_f32 v{SC+gi}, v{SC+gi}, s55, -v{vM}')
            for gi in range(8): a(f'v_exp_f32 v{SC+gi}, v{SC+gi}')
            for i in range(12): a(f'v_mul_f32 v{ACC+i}, v5, v{ACC+i}')
            a(f'v_mul_f32 v{vL}, v5, v{vL}')
            def mkA(gi):
                at=AT[gi&1]
                a(f'v_cvt_pk_bf16_f32 v6, v{SC+gi}, v{SC+gi}')
                for w in range(4): a(f'v_and_b32 v{at+w}, v6, v{MK+w}')
                a(f'v_add_f32 v{vL}, v{vL}, v{SC+gi}')
            mkA(0)
            for gi in range(8):
                if gi<7: mkA(gi+1)
                if last: a(f's_waitcnt vmcnt({3*(7-gi)})')
                at=AT[gi&1]
                for jj in range(3):
                    b=VB+12*gi+4*jj
                    a(f'v_mfma_f32_16x16x32_bf16 v[{ACC+4*jj}:{ACC+4*jj+3}], v[{at}:{at+3}], v[{b}:{b+3}], v[{ACC+4*jj}:{ACC+4*jj+3}]')
                if not last: issue(1,gi)
        a('s_mov_b32 s58, 0')
        a('L_sloop:')
        tile(False)
        a('s_add_u32 s58, s58, 1'); a('s_cmp_lt_u32 s58, 7'); a('s_cbranch_scc1 L_sloop')
        s.ts(3)
        tile(True)
        s.ts(4)
        a(f'v_add_f32_dpp v{vL}, v{vL}, v{vL} row_ror:8 row_mask:0xf bank_mask:0xf')
        a(f'v_mov_b32 v5, v{vL}'); a(f'v_permlane16_swap_b32 v{vL}, v5'); a(f'v_add_f32 v{vL}, v{vL}, v5')
        a(f'v_mov_b32 v5, v{vL}'); a(f'v_permlane32_swap_b32 v{vL}, v5'); a(f'v_add_f32 v13, v{vL}, v5')
        a(f'v_mov_b32 v12, v{vM}')
        a('v_lshrrev_b32 v4, 5, v1'); a('s_lshl_b32 s7, s3, 1'); a('v_add_u32 v4, s7, v4'); a('v_mul_u32_u24 v4, 768, v4')
        a('v_lshl_add_u32 v4, v3, 5, v4'); a('v_and_b32 v5, 16, v1'); a('v_add_u32 v4, v4, v5'); a(f'v_add_u32 v4, {L_OP}, v4')
        a('s_lshl_b32 s7, s3, 3'); a(f's_add_u32 s7, s7, {L_ML}'); a('v_mov_b32 v5, s7'); a('v_mov_b32 v6, 1')
        a('s_mov_b32 exec_lo, 0x00ff00ff'); a('s_mov_b32 exec_hi, 0xff00ff00')
        for jj in range(3): a(f'ds_write_b128 v4, v[{ACC+4*jj}:{ACC+4*jj+3}] offset:{256*jj}')
        a('s_mov_b64 exec, 1')
        a('ds_write_b64 v5, v[12:13]')
        a('s_waitcnt lgkmcnt(0)')
        a(f'ds_add_rtn_u32 v7, v14, v6 offset:{F_CNT}')
        a('s_mov_b64 exec, -1')
        a('v_lshrrev_b32 v4, 5, v1'); a('v_mul_u32_u24 v4, 768, v4'); a('v_and_b32 v5, 31, v1'); a('v_mul_u32_u24 v8, 24, v5'); a('v_add_u32 v4, v4, v8'); a(f'v_add_u32 v4, {L_OP}, v4')
        a(f'v_mov_b32 v9, {L_ML}')
        a('s_waitcnt lgkmcnt(0)')
        a('v_readfirstlane_b32 s7, v7'); a('s_cmp_lg_u32 s7, 3'); a('s_cbranch_scc1 L_send')
        a('ds_read_b128 v[64:67], v9'); a('ds_read_b128 v[68:71], v9 offset:16')
        for w in range(4):
            for e in range(3): a(f'ds_read_b64 v[{72+6*w+2*e}:{73+6*w+2*e}], v4 offset:{1536*w+8*e}')
        a('v_lshlrev_b32 v10, 4, v1')
        a('s_lshl_b32 s7, s2, 10'); a(f's_add_u32 s7, s7, {WS_OP}')
        a('s_waitcnt lgkmcnt(12)')
        a('v_max3_f32 v60, v64, v66, v68'); a('v_max_f32 v60, v60, v70')
        for w in range(4): a(f'v_sub_f32 v{64+2*w}, v{64+2*w}, v60')
        for w in range(4): a(f'v_exp_f32 v{64+2*w}, v{64+2*w}')
        a('v_mul_f32 v61, v64, v65')
        for w in range(1,4): a(f'v_fmac_f32 v61, v{64+2*w}, v{65+2*w}')
        a('v_rcp_f32 v62, v61')
        a('s_waitcnt lgkmcnt(0)')
        for e in range(6): a(f'v_mul_f32 v{72+e}, v64, v{72+e}')
        for w in range(1,4):
            for e in range(6): a(f'v_fmac_f32 v{72+e}, v{64+2*w}, v{72+6*w+e}')
        for e in (0,2,4): a(f'v_permlane32_swap_b32 v{72+e}, v{73+e}')
        for e in (0,2,4): a(f'v_add_f32 v{72+e}, v{72+e}, v{73+e}')
        for e in (0,2,4): a(f'v_mul_f32 v{72+e}, v62, v{72+e}')
        for e in (0,2,4): a(f'v_mov_b32 v{73+e}, v{72+e}')
        for e in (0,2,4): a(f'v_permlane32_swap_b32 v{72+e}, v{73+e}')
        for i,e in enumerate((0,2,4)): a(f'v_cvt_pk_bf16_f32 v{80+i}, v{72+e}, v{73+e}')
        a('v_mov_b32 v83, s4')
        a('s_mov_b32 exec_lo, 0'); a('s_mov_b32 exec_hi, 1')
        a('v_mov_b32 v80, v60'); a('v_mov_b32 v81, v61')
        a('s_mov_b32 exec_lo, -1')
        a('buffer_store_dwordx4 v[80:83], v10, s[44:47], s7 offen sc1')
        a('L_send:')
        s.end()

    def aux_barrier(s):
        s.a('s_waitcnt lgkmcnt(0)'); s.a('s_add_u32 s4, s4, 1'); s.a('s_barrier')
    def load_c(s):
        a=s.a
        s.srd(48,34,None,5120)
        a('v_lshlrev_b32 v4, 4, v1')
        for m in range(4): a(f'buffer_load_dwordx4 v[{16+4*m}:{19+4*m}], v4, s[48:51], 0 offen offset:{1024*m}')
        a('v_add_u32 v5, 4096, v4')
        a('buffer_load_dwordx4 v[32:35], v5, s[48:51], 0 offen')
    def silu_to_lds(s, lds):
        a=s.a
        a(f'v_add_u32 v5, {lds}, v4')
        for m in range(5):
            x=36+0
            T=216
            for i in range(4): s.unpack(16+4*m+i,T+2*i,T+2*i+1)
            for i in range(8): a(f'v_mul_f32 v{T+8+i}, {fhex(-LOG2E)}, v{T+i}')
            for i in range(8): a(f'v_exp_f32 v{T+8+i}, v{T+8+i}')
            for i in range(8): a(f'v_add_f32 v{T+8+i}, 1.0, v{T+8+i}')
            for i in range(8): a(f'v_rcp_f32 v{T+8+i}, v{T+8+i}')
            for i in range(8): a(f'v_mul_f32 v{T+i}, v{T+i}, v{T+8+i}')
            for i in range(4): a(f'v_cvt_pk_bf16_f32 v{16+4*m+i}, v{T+2*i}, v{T+2*i+1}')
            a(f'ds_write_b128 v5, v[{16+4*m}:{19+4*m}] offset:{1024*m}')
        a('v_and_b32 v6, 3, v1'); a('v_mul_u32_u24 v6, 1280, v6'); a('v_lshl_add_u32 v6, v3, 4, v6'); a(f'v_add_u32 v6, {lds}, v6')
        a('s_waitcnt lgkmcnt(0)')
        for kb in range(20): a(f'ds_read_b128 v[{56+4*kb}:{59+4*kb}], v6 offset:{64*kb}')
    def strip_voff(s, r, pitch):
        a=s.a
        a(f'v_lshrrev_b32 v{r}, 1, v1'); a(f's_mov_b32 s7, {pitch}'); a(f'v_mul_lo_u32 v{r}, v{r}, s7'); a(f'v_and_b32 v15, 1, v1'); a(f'v_lshl_add_u32 v{r}, v15, 4, v{r}')
    def mod_tile(s, lds, acc):
        a=s.a
        a('v_lshrrev_b32 v7, 2, v2'); a('v_lshl_add_u32 v7, v3, 3, v7'); a('v_lshlrev_b32 v7, 5, v7'); a('v_and_b32 v15, 3, v1'); a('v_lshl_add_u32 v7, v15, 3, v7'); a(f'v_add_u32 v7, {lds}, v7')
        for kb in range(20):
            a(f'ds_read_b64_tr_b16 v[{136+4*kb}:{137+4*kb}], v7 offset:{1024*kb}')
            a(f'ds_read_b64_tr_b16 v[{138+4*kb}:{139+4*kb}], v7 offset:{1024*kb+128}')
        for kb in range(20):
            if kb<13:
                if kb==0 or True: a(f's_waitcnt lgkmcnt({min(15,2*(19-kb))})')
            else: a(f's_waitcnt lgkmcnt({2*(19-kb)})')
            a(f'v_mfma_f32_16x16x32_bf16 v[{acc}:{acc+3}], v[{136+4*kb}:{139+4*kb}], v[{56+4*kb}:{59+4*kb}], {"0" if kb==0 else "v[%d:%d]"%(acc,acc+3)}')
    def quad_store(s, d, so):
        a=s.a
        a('v_lshlrev_b32 v8, 6, v3'); a('v_lshl_add_u32 v8, v2, 4, v8')
        a('s_mov_b32 exec_lo, 0x000f000f'); a('s_mov_b32 exec_hi, 0x000f000f')
        a(f'buffer_store_dwordx3 v[{d}:{d+2}], v8, s[44:47], {so} offen sc1')
        a('s_mov_b64 exec, -1')

    def wave4(s):
        a=s.a
        a('L_w4:')
        a('s_mul_i32 s7, s6, 983040'); a('s_mul_i32 s56, s5, 384'); a('s_add_u32 s7, s7, s56')
        s.srd(8,22,7,79*12288+384)
        for ph in range(3):
            a(f'v_add_u32 v4, {64*ph}, v1'); a('v_mul_u32_u24 v5, 2731, v4'); a('v_lshrrev_b32 v5, 16, v5')
            a('v_mul_u32_u24 v6, 24, v5'); a('v_sub_u32 v4, v4, v6'); a('v_mul_u32_u24 v5, 12288, v5'); a(f'v_lshl_add_u32 v{8+ph}, v4, 4, v5')
        s.dma(8,[8,9,10],30,lambda p:(p//3)*98304,L_WQ)
        s.aux_barrier()
        a('v_lshrrev_b32 v7, 2, v1'); a('v_mul_u32_u24 v7, 384, v7'); a('v_and_b32 v15, 3, v1'); a('v_lshl_add_u32 v7, v15, 3, v7')
        if L_WQ: a(f'v_add_u32 v7, {L_WQ}, v7')
        a('v_lshlrev_b32 v8, 6, v3'); a('v_lshl_add_u32 v8, v15, 4, v8')
        for nt in range(12): a(f'v_mov_b32 v{160+6*nt}, s4')
        a('s_waitcnt vmcnt(0)')
        s.ts(1)
        for kb in range(5):
            for nt in range(12): a(f'ds_read_b64_tr_b16 v[{16+2*(12*kb+nt)}:{17+2*(12*kb+nt)}], v7 offset:{6144*kb+32*nt}')
        a('s_mul_i32 s56, s6, 1280'); a(f's_add_u32 s56, s56, {WS_H}')
        s.gather_masked([(136+4*kb,3,8,'s56',256*kb) for kb in range(5)],2,0x000f000f000f000f,1)
        s.ts(2)
        a('s_waitcnt lgkmcnt(0)')
        for kb in range(5):
            for nt in range(12):
                ac=156+6*nt; f=16+2*(12*kb+nt)
                a(f'v_mfma_f32_16x16x16_bf16 v[{ac}:{ac+3}], v[{f}:{f+1}], v[{136+4*kb}:{137+4*kb}], {"0" if kb==0 else "v[%d:%d]"%(ac,ac+3)}')
        a('v_mul_u32_u24 v9, 12288, v2'); a('v_lshl_add_u32 v9, v3, 4, v9')
        a('s_mul_i32 s56, s5, 49152'); a('s_mul_i32 s7, s6, 1536'); a('s_add_u32 s56, s56, s7'); a(f's_add_u32 s56, s56, {WS_QP}')
        a('s_mov_b32 exec_lo, 0x000f000f'); a('s_mov_b32 exec_hi, 0x000f000f')
        for nt in range(12):
            ac=156+6*nt
            a(f'buffer_store_dwordx3 v[{ac+2}:{ac+4}], v9, s[44:47], s56 offen offset:{768+64*nt} sc1')
        for nt in range(12): a(f'v_mov_b32 v{156+6*nt+2}, s4')
        for nt in range(12):
            ac=156+6*nt
            a(f'buffer_store_dwordx3 v[{ac}:{ac+2}], v9, s[44:47], s56 offen offset:{64*nt} sc1')
        s.ts(3)
        a('s_lshr_b32 s7, s6, 1'); a('s_lshl_b32 s56, s5, 2'); a('s_add_u32 s7, s7, s56'); a('s_mul_i32 s56, s7, 12288'); a(f's_add_u32 s56, s56, {WS_QP}')
        a('s_mov_b64 exec, -1')
        a('v_lshlrev_b32 v8, 4, v1')
        for i in range(1,4): a(f'v_add_u32 v{8+i}, {3072*i}, v8')
        a('s_mov_b32 exec_hi, 0xffff')
        loads=[(16+4*(2*p+rp),3,8+p//2,'s56',(p&1)*1536+rp*768) for p in range(8) for rp in range(2)]
        s.gather_full(loads,2,1)
        for p in range(1,8):
            for rp in range(2):
                for e in range(2): a(f'v_add_f32 v{16+4*rp+e}, v{16+4*rp+e}, v{16+4*(2*p+rp)+e}')
        a('v_cvt_pk_bf16_f32 v24, v16, v17'); a('v_cvt_pk_bf16_f32 v25, v20, v21')
        a('v_lshlrev_b32 v8, 3, v1'); a(f'v_add_u32 v8, {L_Q}, v8')
        a('ds_write_b64 v8, v[24:25]'); a('s_waitcnt lgkmcnt(0)')
        s.lds_inc(F_Q)
        s.ts(4)
        a('s_branch L_prep')

    def wave5(s):
        a=s.a
        a('L_w5:')
        a('s_cmp_ge_u32 s2, 160'); a('s_cbranch_scc1 L_w5g')
        s.load_c()
        a('s_lshl_b32 s7, s2, 5'); a('s_add_u32 s7, s7, 2560')
        s.srd(8,36,7,639*7680+32)
        s.strip_voff(8,7680)
        s.dma(8,[8],20,lambda p:p*32*7680,L_U0)
        s.aux_barrier()
        a('s_waitcnt vmcnt(20)')
        s.silu_to_lds(L_SC5)
        a('s_waitcnt vmcnt(0) lgkmcnt(0)')
        s.mod_tile(L_U0,232)
        a('v_mov_b32 v238, s4')
        a('s_lshl_b32 s56, s2, 8'); a(f's_add_u32 s56, s56, {WS_MOD}')
        a('v_cvt_pk_bf16_f32 v236, v232, v233'); a('v_cvt_pk_bf16_f32 v237, v234, v235')
        s.quad_store(236,'s56')
        s.ts(1)
        a('s_branch L_prep')
        a('L_w5g:')
        s.aux_barrier()
        s.gu_dma(28,L_U0)
        a('s_branch L_prep')
    def gu_dma(s, ptr, lds):
        a=s.a
        a('s_sub_u32 s7, s2, 160'); a('s_lshl_b32 s7, s7, 5')
        s.srd(8,ptr,7,639*3072+32)
        s.strip_voff(8,3072)
        s.dma(8,[8],20,lambda p:p*32*3072,lds,pace=s.DAUX)
        a('s_waitcnt vmcnt(0)')
        s.lds_inc(F_G)
    def wave6(s):
        a=s.a
        a('L_w6:')
        a('s_cmp_ge_u32 s2, 40'); a('s_cbranch_scc1 L_w6b')
        s.load_c()
        s.srd(12,16,None,5120)
        a('v_and_b32 v15, 3, v1'); a('v_mul_u32_u24 v9, 1280, v15'); a('v_lshrrev_b32 v10, 2, v1'); a('v_lshl_add_u32 v10, v10, 4, v9')
        for m in range(5): a(f'buffer_load_dwordx4 v[{36+4*m}:{39+4*m}], v10, s[12:15], 0 offen offset:{256*m}')
        a('v_lshl_add_u32 v9, v3, 3, v9'); a('s_lshl_b32 s7, s2, 5')
        a('buffer_load_dwordx2 v[240:241], v9, s[12:15], s7 offen')
        s.srd(8,36,7,639*7680+1280+32)
        s.strip_voff(8,7680)
        s.dma(8,[8],20,lambda p:p*32*7680,L_U1)
        s.dma(8,[8],20,lambda p:p*32*7680+1280,L_U2)
        s.aux_barrier()
        a('s_waitcnt vmcnt(46)')
        s.ts(1)
        s.silu_to_lds(L_SC6)
        a('s_waitcnt vmcnt(40)')
        nmu,rs=s.ln_stats([36+i for i in range(20)],216)
        a('s_waitcnt vmcnt(20) lgkmcnt(0)')
        s.ts(2)
        s.mod_tile(L_U1,232)
        a('s_waitcnt vmcnt(0)')
        s.ts(3)
        s.mod_tile(L_U2,236)
        a('v_cvt_pk_bf16_f32 v242, v232, v233'); a('v_cvt_pk_bf16_f32 v243, v234, v235')
        s.unpack(242,244,245); s.unpack(243,246,247)
        a('v_cvt_pk_bf16_f32 v242, v236, v237'); a('v_cvt_pk_bf16_f32 v243, v238, v239')
        s.one_plus(242,243,248)
        s.ln_apply(240,241,nmu,rs,248,244,252,253,232)
        a('v_mov_b32 v254, s4')
        a('s_lshl_b32 s56, s2, 8'); a(f's_add_u32 s56, s56, {WS_H}')
        s.quad_store(252,'s56')
        s.ts(4)
        a('s_branch L_prep')
        a('L_w6b:')
        s.aux_barrier()
        a('s_cmp_lt_u32 s2, 160'); a('s_cbranch_scc1 L_prep')
        s.gu_dma(30,L_U1)
        a('s_branch L_prep')
    def wave7(s):
        a=s.a
        a('L_w7:')
        s.aux_barrier()
        a('s_mul_i32 s7, s5, 245760'); a('s_mul_i32 s56, s6, 160'); a('s_add_u32 s7, s7, s56')
        s.srd(8,24,7,191*1280+160)
        for ph in range(5):
            a(f'v_add_u32 v4, {64*ph}, v1'); a('v_mul_u32_u24 v5, 6554, v4'); a('v_lshrrev_b32 v5, 16, v5')
            a('v_mul_u32_u24 v6, 10, v5'); a('v_sub_u32 v4, v4, v6'); a('v_mul_u32_u24 v5, 1280, v5'); a(f'v_lshl_add_u32 v{16+ph}, v4, 4, v5')
        s.dma(8,[16,17,18,19,20],30,lambda p:(p//5)*32*1280,L_WO,pace=s.DAUX)
        a('s_waitcnt vmcnt(0)')
        s.lds_inc(F_WO)
        a('s_cmp_lt_u32 s2, 160'); a('s_cbranch_scc1 L_w7r')
        a('s_sub_u32 s7, s2, 160'); a('s_mul_i32 s7, s7, 20480')
        s.srd(8,32,7,20480)
        a('v_lshlrev_b32 v8, 4, v1')
        s.dma(8,[8],20,lambda p:p*1024,L_U2,pace=s.DAUX)
        a('s_waitcnt vmcnt(0)')
        s.lds_inc(F_G)
        a('s_branch L_prep')
        a('L_w7r:')
        s.srd(12,16,None,5120)
        a('v_and_b32 v15, 3, v1'); a('v_lshlrev_b32 v8, 4, v15')
        a('v_mul_u32_u24 v9, 1280, v15'); a('v_and_b32 v10, 4, v1'); a('v_add_u32 v9, v9, v10'); a('v_and_b32 v11, 1, v3'); a('v_lshl_add_u32 v9, v11, 1, v9')
        a('s_lshl_b32 s7, s2, 3')
        a('buffer_load_ushort v154, v9, s[12:15], s7 offen')
        a('s_lshl_b32 s56, s2, 6'); a(f's_add_u32 s56, s56, {WS_MOD}'); a(f's_add_u32 s57, s56, {3*10240}')
        s.gather_masked([(176,3,8,'s56',0),(180,3,8,'s57',0)],2,(1<<64)-1,8)
        a('v_cmp_ne_u32 vcc, 0, v10')
        a('v_cndmask_b32 v176, v176, v177, vcc'); a('v_cndmask_b32 v180, v180, v181, vcc')
        a('v_lshlrev_b32 v154, 16, v154')
        s.unpack(176,152,177); s.unpack(180,153,181)
        a('v_cmp_ne_u32 vcc, 0, v11')
        a('v_cndmask_b32 v152, v152, v177, vcc'); a('v_cndmask_b32 v153, v153, v181, vcc')
    def prep_and_tail(s):
        a=s.a
        a('L_prep:')
        s.lds_wait(F_WO,'lg',0,8)
        a('v_lshrrev_b32 v7, 2, v2'); a('v_mul_u32_u24 v8, 6, v3'); a('v_add_u32 v7, v7, v8'); a('v_mul_u32_u24 v7, 160, v7')
        a('v_and_b32 v15, 3, v1'); a('v_lshl_add_u32 v7, v15, 3, v7')
        a('s_sub_u32 s3, s3, 4')
        a('s_lshl_b32 s7, s3, 5'); a(f's_add_u32 s7, s7, {L_WO}'); a('v_add_u32 v7, s7, v7')
        for t in range(2):
            for kb in range(8):
                f=16+32*t+4*kb
                a(f'ds_read_b64_tr_b16 v[{f}:{f+1}], v7 offset:{3840*kb+128*t}')
                a(f'ds_read_b64_tr_b16 v[{f+2}:{f+3}], v7 offset:{3840*kb+128*t+640}')
        a('s_waitcnt lgkmcnt(0)')
        for t in range(2):
            for kb in range(8): a(f'v_mov_b32 v{16+32*t+4*kb+3}, 0')
        a('s_cmp_lt_u32 s2, 160'); a('s_cbranch_scc1 L_tail')
        s.lds_wait(F_G,'ge',3,8)
        a('v_lshrrev_b32 v7, 2, v2'); a('v_lshl_add_u32 v7, v3, 4, v7'); a('v_lshlrev_b32 v7, 5, v7'); a('v_and_b32 v15, 3, v1'); a('v_lshl_add_u32 v7, v15, 3, v7')
        a('s_lshl_b32 s7, s3, 11'); a(f's_add_u32 s7, s7, {L_U0}'); a('v_add_u32 v7, s7, v7')
        for i in range(3):
            for sb in range(4):
                a(f'ds_read_b64_tr_b16 v[{80+8*i+2*sb}:{81+8*i+2*sb}], v7 offset:{8192*i+128*sb}')
                a(f'ds_read_b64_tr_b16 v[{104+8*i+2*sb}:{105+8*i+2*sb}], v7 offset:{8192*i+128*sb+(L_U1-L_U0)}')
        a('v_lshrrev_b32 v7, 2, v1'); a('v_mul_u32_u24 v7, 1280, v7'); a('v_lshl_add_u32 v7, v15, 3, v7')
        a('s_lshl_b32 s7, s3, 7'); a(f's_add_u32 s7, s7, {L_U2}'); a('v_add_u32 v7, s7, v7')
        for i in range(3):
            for sb in range(4): a(f'ds_read_b64_tr_b16 v[{128+8*i+2*sb}:{129+8*i+2*sb}], v7 offset:{512*i+32*sb}')
        a('v_lshlrev_b32 v8, 4, v1')
        a('s_lshl_b32 s56, s3, 10'); a(f's_add_u32 s56, s56, {WS_MOD+10240}'); a('s_add_u32 s57, s56, 10240')
        a('s_cmp_lt_u32 s3, 2'); a('s_cselect_b32 s7, 2, 1'); a('s_lshl_b32 s7, s7, 12'); a('v_add_u32 v9, 4096, v8'); a('v_add_u32 v10, s7, v8')
        s.gather_masked([(176+4*i,3,8+i,'s56',0) for i in range(3)]+[(188+4*i,3,8+i,'s57',0) for i in range(3)],2,(1<<64)-1,8)
        for i in range(3):
            s.unpack(176+4*i,164+4*i,165+4*i); s.unpack(177+4*i,166+4*i,167+4*i)
            s.one_plus(188+4*i,189+4*i,152+4*i)
        a('v_lshrrev_b32 v9, 2, v2')
        for sb in range(4):
            a(f'v_cmp_eq_u32 vcc, {sb}, v9'); a(f'v_cndmask_b32 v{248+sb}, 0, -1, vcc')
        a('s_waitcnt lgkmcnt(0)')
        a('L_tail:')
        a('v_lshlrev_b32 v8, 10, v2'); a('v_lshl_add_u32 v9, v3, 4, v8')
        a('v_and_b32 v10, 1, v2'); a('v_lshlrev_b32 v10, 2, v10'); a('v_lshrrev_b32 v11, 1, v2'); a('v_add_u32 v10, v10, v11'); a('v_lshlrev_b32 v10, 4, v10'); a('v_lshl_add_u32 v10, v3, 12, v10')
        a('s_lshl_b32 s56, s5, 13'); a(f's_add_u32 s56, s56, {WS_OP}')
        a('s_mul_i32 s57, s6, 20'); a('s_lshl_b32 s7, s3, 2'); a('s_add_u32 s57, s57, s7'); a('s_lshl_b32 s57, s57, 12'); a('s_lshl_b32 s7, s5, 7'); a('s_add_u32 s57, s57, s7'); a(f's_add_u32 s57, s57, {WS_WR}')
        a('v_mov_b32 v234, s4'); a('v_mov_b32 v242, s4')
        a('v_and_b32 v11, 1, v1'); a('v_cmp_ne_u32 s[78:79], 0, v11')
        s.ts(5)
        s.lds_wait(F_CNT,'ge',4,4)
        s.ts(6)
        s.gather_masked([(208,4,8,'s56',512)]+[(176+4*kb,4,9,'s56',64*kb) for kb in range(8)],3,0x00ff00ff00ff00ff,1)
        s.ts(7)
        for kb in range(8): a(f'v_mov_b32 v{179+4*kb}, 0')
        for kb in range(8):
            a(f'v_mfma_f32_16x16x32_bf16 v[224:227], v[{16+4*kb}:{19+4*kb}], v[{176+4*kb}:{179+4*kb}], {"0" if kb==0 else "v[224:227]"}')
            if kb==0:
                a('v_max_f32_dpp v212, v208, v208 quad_perm:[1,0,3,2] row_mask:0xf bank_mask:0xf')
                a('v_sub_f32 v212, v208, v212'); a('v_exp_f32 v212, v212')
            if kb==2:
                a('v_mul_f32 v212, v212, v209')
            if kb==4:
                a('v_add_f32_dpp v213, v212, v212 quad_perm:[1,0,3,2] row_mask:0xf bank_mask:0xf'); a('v_rcp_f32 v213, v213')
            if kb==6:
                a('v_mul_f32 v212, v212, v213')
        def wpub(ac, gr, imm_add):
            for r in range(4): a(f'v_mul_f32 v{ac+r}, v212, v{ac+r}')
            for r in range(4): a(f'v_add_f32_dpp v{ac+r}, v{ac+r}, v{ac+r} quad_perm:[1,0,3,2] row_mask:0xf bank_mask:0xf')
            a(f'v_cndmask_b32 v{gr}, v{ac}, v{ac+2}, s[78:79]'); a(f'v_cndmask_b32 v{gr+1}, v{ac+1}, v{ac+3}, s[78:79]')
            a('s_mov_b32 exec_lo, 0x00ff00ff'); a('s_mov_b32 exec_hi, 0x00ff00ff')
            a(f'buffer_store_dwordx3 v[{gr}:{gr+2}], v10, s[44:47], s57 offen sc1')
            a('s_mov_b64 exec, -1')
        a('s_cmp_lg_u32 s3, 0'); a('s_cbranch_scc1 L_w1t')
        for kb in range(8):
            a(f'v_mfma_f32_16x16x32_bf16 v[228:231], v[{48+4*kb}:{51+4*kb}], v[{176+4*kb}:{179+4*kb}], {"0" if kb==0 else "v[228:231]"}')
        wpub(224,232,0)
        a('s_add_u32 s57, s57, 65536')
        wpub(228,240,0)
        a('s_branch L_wdone')
        a('L_w1t:')
        a('s_nop 7')
        wpub(224,232,0)
        a('L_wdone:')
        s.ts(8)
        a('s_cmp_ge_u32 s2, 160'); a('s_cbranch_scc1 L_G')
        a('s_cmp_lg_u32 s3, 3'); a('s_cbranch_scc1 L_auxend')
        a('v_lshlrev_b32 v8, 4, v1')
        a('s_lshl_b32 s56, s2, 12'); a(f's_add_u32 s56, s56, {WS_WR}')
        a('s_lshl_b32 s57, s2, 6'); a(f's_add_u32 s57, s57, {WS_X1}')
        s.gather_masked([(176+4*k,3,8,'s56',1024*k) for k in range(4)],2,(1<<64)-1,1)
        s.ts(9)
        for e in range(2):
            a(f'v_add_f32 v{176+e}, v{176+e}, v{180+e}'); a(f'v_add_f32 v{184+e}, v{184+e}, v{188+e}')
        for e in range(2): a(f'v_add_f32 v{176+e}, v{176+e}, v{184+e}')
        s.red8_pair(176,177,178)
        s.rnd1(176); a('v_mul_f32 v176, v152, v176'); s.rnd1(176); a('v_add_f32 v155, v154, v176')
        a('v_mov_b32 v176, v155'); a('v_mov_b32 v177, v155'); a('v_permlane16_swap_b32 v176, v177'); a('v_cvt_pk_bf16_f32 v232, v176, v177')
        a('v_mov_b32_dpp v233, v232 row_shl:4 row_mask:0xf bank_mask:0xf')
        a('s_mov_b64 exec, 15')
        a('buffer_store_dwordx3 v[232:234], v8, s[44:47], s57 offen sc1')
        a('s_mov_b64 exec, -1')
        s.rnd1(155)
        a('s_mul_i32 s56, s2, 12288'); a(f's_add_u32 s56, s56, {WS_DF}')
        a('v_add_u32 v9, 4096, v8'); a('v_add_u32 v10, 8192, v8')
        s.srd(12,38,None,5120)
        a('v_and_b32 v15, 3, v1'); a('v_mul_u32_u24 v11, 1280, v15'); a('v_and_b32 v15, 4, v1'); a('v_add_u32 v11, v11, v15'); a('s_lshl_b32 s57, s2, 3')
        s.gather_full([(176+4*k,3,8+k//4,'s56',1024*(k%4)) for k in range(12)],2,1)
        s.ts(2)
        for st in (1,2,4,8):
            for k in range(0,12,2*st):
                if k+st<12:
                    for e in range(2): a(f'v_add_f32 v{176+4*k+e}, v{176+4*k+e}, v{176+4*(k+st)+e}')
        s.red8_pair(176,177,178)
        s.rnd1(176); a('v_mul_f32 v176, v153, v176'); s.rnd1(176); a('v_add_f32 v176, v155, v176')
        a('v_mov_b32 v177, v176'); a('v_permlane16_swap_b32 v176, v177'); a('v_cvt_pk_bf16_f32 v176, v176, v177')
        a('s_mov_b64 exec, 0xff')
        a('buffer_store_dword v176, v11, s[12:15], s57 offen')
        a('s_cmp_lg_u32 s2, 0'); a('s_cbranch_scc1 L_auxend')
        a('s_mov_b64 exec, 1'); a('v_mov_b32 v8, 0')
        a('buffer_store_dword v234, v8, s[44:47], 0 offen')
        a('L_auxend:')
        a('s_add_u32 s3, s3, 4')
        s.end()
        a('L_G:')
        a('v_lshlrev_b32 v8, 7, v1')
        a(f's_mov_b32 s56, {WS_WR}')
        s.gather_masked([(176,3,8,'s56',0)],2,0xffffffff,2)
        s.ts(9)
        a('v_lshlrev_b32 v8, 4, v1'); a('v_add_u32 v9, 4096, v8'); a('v_add_u32 v10, 8192, v8')
        a(f's_mov_b32 s56, {WS_X1}')
        s.gather_full([(176+4*m,3,8+m//4,'s56',1024*(m%4)) for m in range(10)],2,1)
        s.ts(2)
        nmu,rs=s.ln_stats([176+4*m+e for m in range(10) for e in range(2)],216)
        for ax in range(4):
            nx=f'L_gm{ax+1}'
            if ax<3: a(f's_cmp_lg_u32 s3, {ax}'); a(f's_cbranch_scc1 {nx}')
            ms=[m for m in (ax,ax+4,ax+8) if m<10]
            for i,m in enumerate(ms):
                s.ln_apply(176+4*m,177+4*m,nmu,rs,152+4*i,164+4*i,224,225,228)
                for sb in range(4):
                    a(f'v_and_b32 v{232+8*(i&1)+2*sb}, v{248+sb}, v224'); a(f'v_and_b32 v{233+8*(i&1)+2*sb}, v{248+sb}, v225')
                for sb in range(4):
                    first=(i==0 and sb==0); B=232+8*(i&1)+2*sb
                    a(f'v_mfma_f32_16x16x16_bf16 v[16:19], v[{80+8*i+2*sb}:{81+8*i+2*sb}], v[{B}:{B+1}], {"0" if first else "v[16:19]"}')
                    a(f'v_mfma_f32_16x16x16_bf16 v[20:23], v[{104+8*i+2*sb}:{105+8*i+2*sb}], v[{B}:{B+1}], {"0" if first else "v[20:23]"}')
            if ax<3: a('s_branch L_gred'); a(f'{nx}:')
        a('L_gred:')
        a(f'v_add_u32 v9, {L_GR}, v8'); a('s_lshl_b32 s7, s3, 10'); a('v_add_u32 v10, s7, v9')
        a('s_nop 7')
        a('ds_write_b128 v10, v[16:19]'); a('ds_write_b128 v10, v[20:23] offset:4096')
        a('s_waitcnt lgkmcnt(0)'); a('s_barrier')
        for t in range(2):
            for w in range(4): a(f'ds_read_b128 v[{24+16*t+4*w}:{27+16*t+4*w}], v9 offset:{4096*t+1024*w}')
        a('v_and_b32 v11, 12, v2'); a('v_add_u32 v11, v11, v3'); a('v_mul_u32_u24 v11, 12288, v11'); a('v_and_b32 v15, 3, v1'); a('v_lshl_add_u32 v11, v15, 4, v11')
        a('s_mul_i32 s56, s3, 196608'); a('s_sub_u32 s7, s2, 160'); a('s_lshl_b32 s7, s7, 7'); a('s_add_u32 s56, s56, s7'); a(f's_add_u32 s56, s56, {WS_DF}')
        for i in range(3): a(f'v_mov_b32 v{64+6*i+4}, s4')
        for t in range(2):
            a(f's_waitcnt lgkmcnt({4-4*t})')
            b=24+16*t
            for r in range(4): a(f'v_add_f32 v{b+r}, v{b+r}, v{b+4+r}'); a(f'v_add_f32 v{b+8+r}, v{b+8+r}, v{b+12+r}')
            for r in range(4): a(f'v_add_f32 v{b+r}, v{b+r}, v{b+8+r}')
        for ro in (4,8):
            for t in range(2):
                for r in range(4): a(f'v_add_f32_dpp v{24+16*t+r}, v{24+16*t+r}, v{24+16*t+r} row_ror:{ro} row_mask:0xf bank_mask:0xf')
        a('v_cvt_pk_bf16_f32 v28, v24, v25'); a('v_cvt_pk_bf16_f32 v29, v26, v27'); a('v_cvt_pk_bf16_f32 v30, v40, v41'); a('v_cvt_pk_bf16_f32 v31, v42, v43')
        s.unpack(28,24,25); s.unpack(29,26,27); s.unpack(30,40,41); s.unpack(31,42,43)
        k0=0.7978845608028654; c0=-2*k0*LOG2E; c1=c0*0.044715
        a(f's_mov_b32 s7, {fhex(c1)}'); a(f'v_mov_b32 v36, {fhex(c0)}')
        for r in range(4): a(f'v_mul_f32 v{32+r}, v{24+r}, v{24+r}')
        for r in range(4): a(f'v_fma_f32 v{32+r}, v{32+r}, s7, v36')
        for r in range(4): a(f'v_mul_f32 v{32+r}, v{32+r}, v{24+r}')
        for r in range(4): a(f'v_exp_f32 v{32+r}, v{32+r}')
        for r in range(4): a(f'v_add_f32 v{32+r}, 1.0, v{32+r}')
        for r in range(4): a(f'v_rcp_f32 v{32+r}, v{32+r}')
        for r in range(4): a(f'v_mul_f32 v{24+r}, v{24+r}, v{32+r}')
        a('v_cvt_pk_bf16_f32 v28, v24, v25'); a('v_cvt_pk_bf16_f32 v29, v26, v27'); s.unpack(28,24,25); s.unpack(29,26,27)
        for r in range(4): a(f'v_mul_f32 v{24+r}, v{24+r}, v{40+r}')
        a('v_cvt_pk_bf16_f32 v28, v24, v25'); a('v_cvt_pk_bf16_f32 v29, v26, v27')
        for sb in range(4):
            a(f'v_and_b32 v{48+2*sb}, v{248+sb}, v28'); a(f'v_and_b32 v{49+2*sb}, v{248+sb}, v29')
        for sb in range(4):
            for i in range(3):
                ac=64+6*i
                a(f'v_mfma_f32_16x16x16_bf16 v[{ac}:{ac+3}], v[{128+8*i+2*sb}:{129+8*i+2*sb}], v[{48+2*sb}:{49+2*sb}], {"0" if sb==0 else "v[%d:%d]"%(ac,ac+3)}')
        a('s_add_u32 s57, s56, 786432'); a('s_add_u32 s58, s56, 1572864')
        so=['s56','s57','s58']
        for i in range(2): a(f'buffer_store_dwordx3 v[{64+6*i+2}:{64+6*i+4}], v11, s[44:47], {so[i]} offen offset:64 sc1')
        a('s_cmp_ge_u32 s3, 2'); a('s_cbranch_scc1 L_g2')
        a(f'buffer_store_dwordx3 v[78:80], v11, s[44:47], s58 offen offset:64 sc1')
        a('v_mov_b32 v78, s4')
        a(f'buffer_store_dwordx3 v[76:78], v11, s[44:47], s58 offen sc1')
        a('L_g2:')
        a('s_nop 1')
        for i in range(2): a(f'v_mov_b32 v{64+6*i+2}, s4')
        for i in range(2): a(f'buffer_store_dwordx3 v[{64+6*i}:{64+6*i+2}], v11, s[44:47], {so[i]} offen sc1')
        a('s_add_u32 s3, s3, 4')
        s.end()

    def build(s):
        a=s.a
        a(f'{NAME}_kernel:')
        s.ts(0)
        a('s_cmp_ge_u32 s2, 256'); a('s_cbranch_scc1 L_exit')
        a('s_load_dwordx16 s[16:31], s[0:1], 0'); a('s_load_dwordx8 s[32:39], s[0:1], 64'); a('s_load_dwordx4 s[40:43], s[0:1], 96')
        a('v_lshrrev_b32 v2, 6, v0'); a('v_and_b32 v1, 63, v0'); a('v_readfirstlane_b32 s3, v2')
        a('s_lshr_b32 s5, s2, 3'); a('s_and_b32 s6, s2, 7')
        a(f's_mov_b32 s52, {TIMEOUT}'); a('s_mov_b32 s53, 0xffff0000'); a(f's_mov_b32 s54, {fhex(SCALE)}'); a(f's_mov_b32 s55, {fhex(LOG2E)}');
        a(f'v_mov_b32 v14, {L_FL}')
        a('v_and_b32 v2, 15, v1'); a('v_lshrrev_b32 v3, 4, v1')
        if s.TS:
            for i in range(1,11): a(f's_mov_b64 s[{80+2*i}:{81+2*i}], 0')
        a('s_waitcnt lgkmcnt(0)')
        a('s_load_dword s4, s[42:43], 0')
        a('s_mov_b32 s26, 0x3f803f80')
        s.srd(44,42,None,WS_SIZE)
        a('s_cmp_lt_u32 s3, 4'); a('s_cbranch_scc1 L_stream')
        a('s_cmp_eq_u32 s3, 4'); a('s_cbranch_scc1 L_w4')
        a('s_cmp_eq_u32 s3, 5'); a('s_cbranch_scc1 L_w5')
        a('s_cmp_eq_u32 s3, 6'); a('s_cbranch_scc1 L_w6')
        a('s_branch L_w7')
        a('L_timeout:')
        a('s_mov_b64 exec, -1')
        a('L_exit:')
        a('s_endpgm')
        s.stream(); s.wave4(); s.wave5(); s.wave6(); s.wave7(); s.prep_and_tail()
        ref=open('cdna_kernels/'+NAME+'.s.ref').read().split('\n')
        head=[l for l in ref if l.startswith(';') and '@launch' not in l]
        out='\n'.join(head)+f'\n; @launch grid=(256,1,1) block=(512,1,1) lds={LDS_BYTES}\n'
        out+=f'.amdgcn_target "amdgcn-amd-amdhsa--gfx950"\n.text\n.globl {NAME}_kernel\n.p2align 8\n.type {NAME}_kernel,@function\n'
        out+=a.text()
        out+=f'''.section .rodata,"a"
.p2align 6
.amdhsa_kernel {NAME}_kernel
  .amdhsa_next_free_vgpr 256
  .amdhsa_next_free_sgpr 102
  .amdhsa_accum_offset 256
  .amdhsa_group_segment_fixed_size 0
  .amdhsa_kernarg_size 112
  .amdhsa_user_sgpr_count 2
  .amdhsa_user_sgpr_kernarg_segment_ptr 1
  .amdhsa_system_sgpr_workgroup_id_x 1
  .amdhsa_float_denorm_mode_32 3
.end_amdhsa_kernel
'''
        return out
if __name__=='__main__':
    import argparse
    p=argparse.ArgumentParser(); p.add_argument('-o',default='cdna_kernels/'+NAME+'.s'); p.add_argument('--ts',action='store_true'); p.add_argument('-D',type=int,default=9); p.add_argument('--daux',type=int,default=4)
    x=p.parse_args()
    g=G(D=x.D,TS=x.ts,DAUX=x.daux); open(x.o,'w').write(g.build()); print('pads',g.a.pads,'ins',len(g.a.L))
```

```python
import sys, struct
from asmlib import Asm
NAME='adaLN_cond__gqa_block_cached__geglu_ffn__decode'
def fhex(f): return '0x%08x'%struct.unpack('<I',struct.pack('<f',f))[0]
LOG2E=1.4426950408889634
SCALE=192**-0.5
WS_H=0x1000; WS_MOD=0x4000; WS_X1=0xE000; WS_OP=0x20000; WS_WR=0x60000; WS_QP=0x100000; WS_DF=0x280000; WS_TS=0x500000; WS_SIZE=0x600000
L_WQ=0x0; L_WO=0x7800; L_U0=0xF000; L_U1=0x14000; L_U2=0x19000; L_SC5=0x1E000; L_SC6=0x1F400; L_OP=0x20800; L_GR=0x22000; L_Q=0x24000; L_ML=0x24200; L_FL=0x24240; LDS_BYTES=0x24300
F_CNT=0; F_Q=4; F_WO=8; F_G=12
TIMEOUT=1<<21

class G:
    def __init__(s, D=9, TS=False, DAUX=4, ntw='nt', kpol='nt', vpol='nt'):
        s.pol=(kpol,vpol)
        s.a=Asm(); s.D=D; s.TS=TS; s.DAUX=DAUX; s.ntw=ntw; s.uid=0
    def lab(s,p):
        s.uid+=1; return f'L_{p}_{s.uid}'
    def ts(s,i):
        if s.TS: s.a(f's_memrealtime s[{80+2*i}:{81+2*i}]')
    def ts_flush(s):
        a=s.a
        if not s.TS: return
        a('s_waitcnt lgkmcnt(0)')
        a('s_lshl_b32 s7, s2, 3'); a('s_add_u32 s7, s7, s3'); a('s_lshl_b32 s7, s7, 7'); a(f's_add_u32 s7, s7, {WS_TS}')
        a('s_mov_b64 exec, 1')
        a('v_mov_b32 v1, 0')
        for i in range(0,11):
            a(f'v_mov_b32 v2, s{80+2*i}'); a(f'v_mov_b32 v3, s{81+2*i}')
            a(f'buffer_store_dwordx2 v[2:3], v1, s[44:47], s7 offen offset:{8*i}')
        a('s_getreg_b32 s56, hwreg(HW_REG_XCC_ID)'); a('v_mov_b32 v2, s56')
        a('buffer_store_dword v2, v1, s[44:47], s7 offen offset:88')
    def end(s):
        s.ts(10); s.ts_flush(); s.a('s_endpgm')
    def srd(s, d, ptr, off_sgpr, size):
        a=s.a
        if off_sgpr is None:
            a(f's_mov_b32 s{d}, s{ptr}'); a(f's_mov_b32 s{d+1}, s{ptr+1}')
        else:
            a(f's_add_u32 s{d}, s{ptr}, s{off_sgpr}'); a(f's_addc_u32 s{d+1}, s{ptr+1}, 0')
        a(f's_mov_b32 s{d+2}, {size}'); a(f's_mov_b32 s{d+3}, 0x20000')
    def timeout(s, loop, sleep):
        a=s.a
        a('s_sub_u32 s52, s52, 1'); a('s_cbranch_scc1 L_timeout')
        if sleep: a(f's_sleep {sleep}')
        a(f's_branch {loop}')
    def lds_wait(s, off, cmpop, val, sleep, vt=15):
        a=s.a; lp=s.lab('lw'); dn=s.lab('lwd')
        a(f'{lp}:')
        a(f'ds_read_b32 v{vt}, v14 offset:{off}'); a('s_waitcnt lgkmcnt(0)')
        a(f'v_readfirstlane_b32 s7, v{vt}'); a(f's_cmp_{cmpop}_u32 s7, {val}'); a(f's_cbranch_scc1 {dn}')
        s.timeout(lp,sleep); a(f'{dn}:')
    def lds_inc(s, off):
        a=s.a
        a('s_mov_b64 exec, 1'); a('v_mov_b32 v15, 1'); a(f'ds_add_u32 v14, v15 offset:{off}'); a('s_mov_b64 exec, -1')
    def gather_masked(s, loads, tagpos, init, sleep):
        a=s.a; lp=s.lab('gm'); dn=s.lab('gmd'); assert len(loads)<=10
        lo,hi=init&0xffffffff, init>>32
        for k in range(len(loads)):
            a(f's_mov_b32 s{60+2*k}, 0x{lo:x}'); a(f's_mov_b32 s{61+2*k}, 0x{hi:x}')
        a(f'{lp}:')
        for k,(d,n,vo,so,im) in enumerate(loads):
            a(f's_mov_b64 exec, s[{60+2*k}:{61+2*k}]')
            a(f'buffer_load_dwordx{n} v[{d}:{d+n-1}], v{vo}, s[44:47], {so} offen offset:{im} sc1')
        for k,(d,n,vo,so,im) in enumerate(loads):
            a(f's_waitcnt vmcnt({len(loads)-1-k})')
            a(f's_mov_b64 exec, s[{60+2*k}:{61+2*k}]')
            a(f'v_cmp_ne_u32 s[{60+2*k}:{61+2*k}], s4, v{d+tagpos}')
        a('s_mov_b64 exec, -1')
        if len(loads)==1: a('s_or_b64 s[58:59], s[60:61], s[60:61]')
        else:
            a('s_or_b64 s[58:59], s[60:61], s[62:63]')
            for k in range(2,len(loads)): a(f's_or_b64 s[58:59], s[58:59], s[{60+2*k}:{61+2*k}]')
        a(f's_cbranch_scc0 {dn}')
        s.timeout(lp,sleep); a(f'{dn}:')
    def gather_full(s, loads, tagpos, sleep, t0=12, t1=13):
        a=s.a; lp=s.lab('gf'); dn=s.lab('gfd')
        a(f'{lp}:')
        for k,(d,n,vo,so,im) in enumerate(loads):
            a(f'buffer_load_dwordx{n} v[{d}:{d+n-1}], v{vo}, s[44:47], {so} offen offset:{im} sc1')
        tg=[d+tagpos for (d,n,vo,so,im) in loads]; n=len(tg)
        a(f's_waitcnt vmcnt({n-2})')
        a(f'v_min_u32 v{t0}, v{tg[0]}, v{tg[1]}'); a(f'v_max_u32 v{t1}, v{tg[0]}, v{tg[1]}')
        k=2
        while k<n:
            if k+1<n:
                a(f's_waitcnt vmcnt({n-2-k})')
                a(f'v_min3_u32 v{t0}, v{t0}, v{tg[k]}, v{tg[k+1]}'); a(f'v_max3_u32 v{t1}, v{t1}, v{tg[k]}, v{tg[k+1]}'); k+=2
            else:
                a('s_waitcnt vmcnt(0)')
                a(f'v_min_u32 v{t0}, v{t0}, v{tg[k]}'); a(f'v_max_u32 v{t1}, v{t1}, v{tg[k]}'); k+=1
        a(f'v_cmp_ne_u32 s[58:59], s4, v{t0}'); a(f'v_cmp_ne_u32 vcc, s4, v{t1}')
        a('s_or_b64 s[58:59], s[58:59], vcc'); a(f's_cbranch_scc0 {dn}')
        s.timeout(lp,sleep); a(f'{dn}:')
    def dma(s, srd, voffs, n, sofn, lds, pace=None):
        a=s.a; last=None
        for p in range(n):
            so=sofn(p)
            if pace is not None and p>=pace: a(f's_waitcnt vmcnt({pace-1})')
            if so!=last: a(f's_mov_b32 s57, {so}'); last=so
            a(f's_mov_b32 m0, {lds+p*1024}')
            a(f'buffer_load_dwordx4 v{voffs[p%len(voffs)]}, s[{srd}:{srd+3}], s57 offen {s.ntw} lds')
    def unpack(s, p, lo, hi):
        s.a(f'v_lshlrev_b32 v{lo}, 16, v{p}'); s.a(f'v_and_b32 v{hi}, s53, v{p}')
    def ln_stats(s, dw, t):
        a=s.a; S0,S1,Q0,Q1=t,t+1,t+2,t+3
        for i,d in enumerate(dw):
            S=(S0,S1)[i&1]; Q=(Q0,Q1)[i&1]
            a(f'v_dot2_f32_bf16 v{S}, v{d}, s26, {"0" if i<2 else "v%d"%S}')
            a(f'v_dot2_f32_bf16 v{Q}, v{d}, v{d}, {"0" if i<2 else "v%d"%Q}')
        a(f'v_add_f32 v{S0}, v{S0}, v{S1}'); a(f'v_add_f32 v{Q0}, v{Q0}, v{Q1}')
        for r in (4,8):
            a(f'v_add_f32_dpp v{S0}, v{S0}, v{S0} row_ror:{r} row_mask:0xf bank_mask:0xf')
            a(f'v_add_f32_dpp v{Q0}, v{Q0}, v{Q0} row_ror:{r} row_mask:0xf bank_mask:0xf')
        a(f'v_permlane16_swap_b32 v{S0}, v{Q0}'); a(f'v_add_f32 v{S0}, v{S0}, v{Q0}')
        a(f'v_mov_b32 v{Q0}, v{S0}'); a(f'v_permlane32_swap_b32 v{S0}, v{Q0}'); a(f'v_add_f32 v{S0}, v{S0}, v{Q0}')
        a(f'v_mov_b32 v{Q0}, v{S0}'); a(f'v_permlane16_swap_b32 v{S0}, v{Q0}')
        nmu,rs=t+4,t+6
        a(f'v_mul_f32 v{S0}, {fhex(-1/640)}, v{S0}'); a(f'v_mul_f32 v{Q0}, {fhex(1/640)}, v{Q0}')
        a(f'v_fma_f32 v{Q0}, -v{S0}, v{S0}, v{Q0}'); a(f'v_max_f32 v{Q0}, 0, v{Q0}')
        a(f'v_cvt_pk_bf16_f32 v{S1}, v{S0}, v{Q0}'); s.unpack(S1,nmu,Q0)
        a(f'v_add_f32 v{Q0}, {fhex(1e-5)}, v{Q0}'); a(f'v_cvt_pk_bf16_f32 v{Q0}, v{Q0}, v{Q0}'); a(f'v_and_b32 v{Q0}, s53, v{Q0}')
        a(f'v_sqrt_f32 v{Q0}, v{Q0}'); a(f'v_cvt_pk_bf16_f32 v{Q0}, v{Q0}, v{Q0}'); a(f'v_and_b32 v{Q0}, s53, v{Q0}')
        a(f'v_rcp_f32 v{rs}, v{Q0}')
        return nmu,rs
    def ln_apply(s, d0, d1, nmu, rs, c1, sh, o0, o1, x):
        a=s.a
        def rnd(last=False):
            a(f'v_cvt_pk_bf16_f32 v{o0}, v{x}, v{x+1}'); a(f'v_cvt_pk_bf16_f32 v{o1}, v{x+2}, v{x+3}')
            if not last: s.unpack(o0,x,x+1); s.unpack(o1,x+2,x+3)
        s.unpack(d0,x,x+1); s.unpack(d1,x+2,x+3)
        for h in (0,2): a(f'v_pk_add_f32 v[{x+h}:{x+h+1}], v[{x+h}:{x+h+1}], v[{nmu}:{nmu+1}] op_sel_hi:[1,0]')
        rnd()
        for h in (0,2): a(f'v_pk_mul_f32 v[{x+h}:{x+h+1}], v[{x+h}:{x+h+1}], v[{rs}:{rs+1}] op_sel_hi:[1,0]')
        rnd()
        for h in (0,2): a(f'v_pk_mul_f32 v[{x+h}:{x+h+1}], v[{x+h}:{x+h+1}], v[{c1+h}:{c1+h+1}]')
        rnd()
        for h in (0,2): a(f'v_pk_add_f32 v[{x+h}:{x+h+1}], v[{x+h}:{x+h+1}], v[{sh+h}:{sh+h+1}]')
        rnd(True)
    def one_plus(s, p0, p1, o):
        a=s.a
        s.unpack(p0,o,o+1); s.unpack(p1,o+2,o+3)
        for i in range(4): a(f'v_add_f32 v{o+i}, 1.0, v{o+i}')
        a(f'v_cvt_pk_bf16_f32 v{p0}, v{o}, v{o+1}'); a(f'v_cvt_pk_bf16_f32 v{p1}, v{o+2}, v{o+3}')
        s.unpack(p0,o,o+1); s.unpack(p1,o+2,o+3)
    def red8_pair(s, a0, a1, t):
        a=s.a
        a(f'v_add_f32_dpp v{a0}, v{a0}, v{a0} row_ror:8 row_mask:0xf bank_mask:0xf')
        a(f'v_add_f32_dpp v{a1}, v{a1}, v{a1} row_ror:8 row_mask:0xf bank_mask:0xf')
        a(f'v_permlane16_swap_b32 v{a0}, v{a1}'); a(f'v_add_f32 v{a0}, v{a0}, v{a1}')
        a(f'v_mov_b32 v{t}, v{a0}'); a(f'v_permlane32_swap_b32 v{a0}, v{t}'); a(f'v_add_f32 v{a0}, v{a0}, v{t}')
    def rnd1(s, r):
        s.a(f'v_cvt_pk_bf16_f32 v{r}, v{r}, v{r}'); s.a(f'v_and_b32 v{r}, s53, v{r}')

    def stream(s):
        a=s.a; D=s.D
        KB=64; VB=160; Q=16; ACC=28; SC=40; MK=48; AT=(52,56); vM=60; vL=61; vO=62
        a('L_stream:')
        a('s_lshr_b32 s7, s6, 1'); a('s_lshl_b32 s7, s7, 5'); a('s_add_u32 s7, s7, s5'); a('s_mul_i32 s7, s7, 1572864')
        a('s_and_b32 s56, s6, 1'); a('s_lshl_b32 s56, s56, 2'); a('s_add_u32 s56, s56, s3'); a('s_mul_i32 s56, s56, 196608'); a('s_add_u32 s7, s7, s56')
        s.srd(8,18,7,196608); s.srd(12,20,7,196608)
        a(f'v_lshrrev_b32 v2, 3, v1'); a(f'v_mul_u32_u24 v{vO}, 384, v2'); a('v_and_b32 v3, 7, v1'); a(f'v_lshl_add_u32 v{vO}, v3, 4, v{vO}')
        a('s_mov_b32 s56, 0'); a('s_mov_b32 s57, 0')
        def issue(kv, gi, pace=True):
            base=(KB,VB)[kv]+12*gi; srd=('s[8:11]','s[12:15]')[kv]; so=('s56','s57')[kv]
            if pace: a(f's_waitcnt vmcnt({D-3})')
            for jj in range(3):
                a(f'buffer_load_dwordx4 v[{base+4*jj}:{base+4*jj+3}], v{vO}, {srd}, {so} offen offset:{(gi&1)*3072+jj*128} {s.pol[kv]}')
            if gi&1: a(f's_add_u32 {so}, {so}, 6144')
        n=0
        for kv in (0,1):
            for gi in range(8):
                issue(kv,gi,pace=(n>=D)); n+=3
                if n==D:
                    a('s_waitcnt lgkmcnt(0)'); a('s_add_u32 s4, s4, 1')
                    sk=s.lab('nf'); a('s_cmp_lg_u32 s3, 0'); a(f's_cbranch_scc1 {sk}')
                    for i in range(4,8): a(f'v_mov_b32 v{i}, 0')
                    a('ds_write_b128 v14, v[4:7]'); a('s_waitcnt lgkmcnt(0)')
                    a(f'{sk}:'); a('s_barrier')
                    a('v_and_b32 v4, 1, v1'); a('v_cmp_eq_u32 vcc, 1, v4'); a('v_mov_b32 v5, 0xffff'); a('v_mov_b32 v6, s53')
                    a('v_cndmask_b32 v5, v5, v6, vcc'); a('v_lshrrev_b32 v4, 1, v3')
                    for w in range(4):
                        a(f'v_cmp_eq_u32 vcc, {w}, v4'); a(f'v_cndmask_b32 v{MK+w}, 0, v5, vcc')
                    for i in range(12): a(f'v_mov_b32 v{ACC+i}, 0')
                    a(f'v_mov_b32 v{vM}, {fhex(-1e30)}'); a(f'v_mov_b32 v{vL}, 0')
        s.ts(1)
        s.lds_wait(F_Q,'lg',0,1)
        a(f'v_lshlrev_b32 v4, 4, v3'); a(f'v_add_u32 v4, {L_Q}, v4')
        for jj in range(3): a(f'ds_read_b128 v[{Q+4*jj}:{Q+4*jj+3}], v4 offset:{128*jj}')
        a('s_waitcnt lgkmcnt(0)')
        s.ts(2)
        def tile(last):
            for g2 in range(0,8,2):
                for i in range(12):
                    for gi in (g2,g2+1):
                        a(f'v_dot2_f32_bf16 v{SC+gi}, v{KB+12*gi+i}, v{Q+i}, {"0" if i==0 else "v%d"%(SC+gi)}')
                if not last: issue(0,g2); issue(0,g2+1)
            for m in ('quad_perm:[1,0,3,2]','quad_perm:[2,3,0,1]','row_half_mirror'):
                for gi in range(8): a(f'v_add_f32_dpp v{SC+gi}, v{SC+gi}, v{SC+gi} {m} row_mask:0xf bank_mask:0xf')
            for g2 in range(0,8,2): a(f'v_cvt_pk_bf16_f32 v{4+g2//2}, v{SC+g2}, v{SC+g2+1}')
            for g2 in range(0,8,2): s.unpack(4+g2//2,SC+g2,SC+g2+1)
            for gi in range(8): a(f'v_mul_f32 v{SC+gi}, s54, v{SC+gi}')
            for g2 in range(0,8,2): a(f'v_cvt_pk_bf16_f32 v{4+g2//2}, v{SC+g2}, v{SC+g2+1}')
            for g2 in range(0,8,2): s.unpack(4+g2//2,SC+g2,SC+g2+1)
            a(f'v_max3_f32 v4, v{SC}, v{SC+1}, v{SC+2}'); a(f'v_max3_f32 v5, v{SC+3}, v{SC+4}, v{SC+5}')
            a(f'v_max3_f32 v4, v4, v{SC+6}, v{SC+7}'); a('v_max_f32 v4, v4, v5')
            a('v_max_f32_dpp v4, v4, v4 row_ror:8 row_mask:0xf bank_mask:0xf')
            a('v_mov_b32 v5, v4'); a('v_permlane16_swap_b32 v4, v5'); a('v_max_f32 v4, v4, v5')
            a('v_mov_b32 v5, v4'); a('v_permlane32_swap_b32 v4, v5'); a('v_max_f32 v4, v4, v5')
            a('v_mul_f32 v4, s55, v4'); a(f'v_max_f32 v4, v4, v{vM}')
            a(f'v_sub_f32 v5, v{vM}, v4'); a('v_exp_f32 v5, v5'); a(f'v_mov_b32 v{vM}, v4')
            for gi in range(8): a(f'v_fma_f32 v{SC+gi}, v{SC+gi}, s55, -v{vM}')
            for gi in range(8): a(f'v_exp_f32 v{SC+gi}, v{SC+gi}')
            for i in range(12): a(f'v_mul_f32 v{ACC+i}, v5, v{ACC+i}')
            a(f'v_mul_f32 v{vL}, v5, v{vL}')
            def mkA(gi):
                at=AT[gi&1]
                a(f'v_cvt_pk_bf16_f32 v6, v{SC+gi}, v{SC+gi}')
                for w in range(4): a(f'v_and_b32 v{at+w}, v6, v{MK+w}')
                a(f'v_add_f32 v{vL}, v{vL}, v{SC+gi}')
            mkA(0)
            for gi in range(8):
                if gi<7: mkA(gi+1)
                if last: a(f's_waitcnt vmcnt({3*(7-gi)})')
                at=AT[gi&1]
                for jj in range(3):
                    b=VB+12*gi+4*jj
                    a(f'v_mfma_f32_16x16x32_bf16 v[{ACC+4*jj}:{ACC+4*jj+3}], v[{at}:{at+3}], v[{b}:{b+3}], v[{ACC+4*jj}:{ACC+4*jj+3}]')
                if not last: issue(1,gi)
        a('s_mov_b32 s58, 0')
        a('L_sloop:')
        tile(False)
        a('s_add_u32 s58, s58, 1'); a('s_cmp_lt_u32 s58, 7'); a('s_cbranch_scc1 L_sloop')
        s.ts(3)
        tile(True)
        s.ts(4)
        a(f'v_add_f32_dpp v{vL}, v{vL}, v{vL} row_ror:8 row_mask:0xf bank_mask:0xf')
        a(f'v_mov_b32 v5, v{vL}'); a(f'v_permlane16_swap_b32 v{vL}, v5'); a(f'v_add_f32 v{vL}, v{vL}, v5')
        a(f'v_mov_b32 v5, v{vL}'); a(f'v_permlane32_swap_b32 v{vL}, v5'); a(f'v_add_f32 v13, v{vL}, v5')
        a(f'v_mov_b32 v12, v{vM}')
        a('v_lshrrev_b32 v4, 5, v1'); a('s_lshl_b32 s7, s3, 1'); a('v_add_u32 v4, s7, v4'); a('v_mul_u32_u24 v4, 768, v4')
        a('v_lshl_add_u32 v4, v3, 5, v4'); a('v_and_b32 v5, 16, v1'); a('v_add_u32 v4, v4, v5'); a(f'v_add_u32 v4, {L_OP}, v4')
        a('s_lshl_b32 s7, s3, 3'); a(f's_add_u32 s7, s7, {L_ML}'); a('v_mov_b32 v5, s7'); a('v_mov_b32 v6, 1')
        a('s_mov_b32 exec_lo, 0x00ff00ff'); a('s_mov_b32 exec_hi, 0xff00ff00')
        for jj in range(3): a(f'ds_write_b128 v4, v[{ACC+4*jj}:{ACC+4*jj+3}] offset:{256*jj}')
        a('s_mov_b64 exec, 1')
        a('ds_write_b64 v5, v[12:13]')
        a('s_waitcnt lgkmcnt(0)')
        a(f'ds_add_rtn_u32 v7, v14, v6 offset:{F_CNT}')
        a('s_mov_b64 exec, -1')
        a('v_lshrrev_b32 v4, 5, v1'); a('v_mul_u32_u24 v4, 768, v4'); a('v_and_b32 v5, 31, v1'); a('v_mul_u32_u24 v8, 24, v5'); a('v_add_u32 v4, v4, v8'); a(f'v_add_u32 v4, {L_OP}, v4')
        a(f'v_mov_b32 v9, {L_ML}')
        a('s_waitcnt lgkmcnt(0)')
        a('v_readfirstlane_b32 s7, v7'); a('s_cmp_lg_u32 s7, 3'); a('s_cbranch_scc1 L_send')
        a('ds_read_b128 v[64:67], v9'); a('ds_read_b128 v[68:71], v9 offset:16')
        for w in range(4):
            for e in range(3): a(f'ds_read_b64 v[{72+6*w+2*e}:{73+6*w+2*e}], v4 offset:{1536*w+8*e}')
        a('v_lshlrev_b32 v10, 4, v1')
        a('s_lshl_b32 s7, s2, 10'); a(f's_add_u32 s7, s7, {WS_OP}')
        a('s_waitcnt lgkmcnt(12)')
        a('v_max3_f32 v60, v64, v66, v68'); a('v_max_f32 v60, v60, v70')
        for w in range(4): a(f'v_sub_f32 v{64+2*w}, v{64+2*w}, v60')
        for w in range(4): a(f'v_exp_f32 v{64+2*w}, v{64+2*w}')
        a('v_mul_f32 v61, v64, v65')
        for w in range(1,4): a(f'v_fmac_f32 v61, v{64+2*w}, v{65+2*w}')
        a('v_rcp_f32 v62, v61')
        a('s_waitcnt lgkmcnt(0)')
        for e in range(6): a(f'v_mul_f32 v{72+e}, v64, v{72+e}')
        for w in range(1,4):
            for e in range(6): a(f'v_fmac_f32 v{72+e}, v{64+2*w}, v{72+6*w+e}')
        for e in (0,2,4): a(f'v_permlane32_swap_b32 v{72+e}, v{73+e}')
        for e in (0,2,4): a(f'v_add_f32 v{72+e}, v{72+e}, v{73+e}')
        for e in (0,2,4): a(f'v_mul_f32 v{72+e}, v62, v{72+e}')
        for e in (0,2,4): a(f'v_mov_b32 v{73+e}, v{72+e}')
        for e in (0,2,4): a(f'v_permlane32_swap_b32 v{72+e}, v{73+e}')
        for i,e in enumerate((0,2,4)): a(f'v_cvt_pk_bf16_f32 v{80+i}, v{72+e}, v{73+e}')
        a('v_mov_b32 v83, s4')
        a('s_mov_b32 exec_lo, 0'); a('s_mov_b32 exec_hi, 1')
        a('v_mov_b32 v80, v60'); a('v_mov_b32 v81, v61')
        a('s_mov_b32 exec_lo, -1')
        a('buffer_store_dwordx4 v[80:83], v10, s[44:47], s7 offen sc1')
        a('L_send:')
        s.end()

    def aux_barrier(s):
        s.a('s_waitcnt lgkmcnt(0)'); s.a('s_add_u32 s4, s4, 1'); s.a('s_barrier')
    def load_c(s):
        a=s.a
        s.srd(48,34,None,5120)
        a('v_lshlrev_b32 v4, 4, v1')
        for m in range(4): a(f'buffer_load_dwordx4 v[{16+4*m}:{19+4*m}], v4, s[48:51], 0 offen offset:{1024*m}')
        a('v_add_u32 v5, 4096, v4')
        a('buffer_load_dwordx4 v[32:35], v5, s[48:51], 0 offen')
    def silu_to_lds(s, lds):
        a=s.a
        a(f'v_add_u32 v5, {lds}, v4')
        for m in range(5):
            x=36+0
            T=216
            for i in range(4): s.unpack(16+4*m+i,T+2*i,T+2*i+1)
            for i in range(8): a(f'v_mul_f32 v{T+8+i}, {fhex(-LOG2E)}, v{T+i}')
            for i in range(8): a(f'v_exp_f32 v{T+8+i}, v{T+8+i}')
            for i in range(8): a(f'v_add_f32 v{T+8+i}, 1.0, v{T+8+i}')
            for i in range(8): a(f'v_rcp_f32 v{T+8+i}, v{T+8+i}')
            for i in range(8): a(f'v_mul_f32 v{T+i}, v{T+i}, v{T+8+i}')
            for i in range(4): a(f'v_cvt_pk_bf16_f32 v{16+4*m+i}, v{T+2*i}, v{T+2*i+1}')
            a(f'ds_write_b128 v5, v[{16+4*m}:{19+4*m}] offset:{1024*m}')
        a('v_and_b32 v6, 3, v1'); a('v_mul_u32_u24 v6, 1280, v6'); a('v_lshl_add_u32 v6, v3, 4, v6'); a(f'v_add_u32 v6, {lds}, v6')
        a('s_waitcnt lgkmcnt(0)')
        for kb in range(20): a(f'ds_read_b128 v[{56+4*kb}:{59+4*kb}], v6 offset:{64*kb}')
    def strip_voff(s, r, pitch):
        a=s.a
        a(f'v_lshrrev_b32 v{r}, 1, v1'); a(f's_mov_b32 s7, {pitch}'); a(f'v_mul_lo_u32 v{r}, v{r}, s7'); a(f'v_and_b32 v15, 1, v1'); a(f'v_lshl_add_u32 v{r}, v15, 4, v{r}')
    def mod_tile(s, lds, acc):
        a=s.a
        a('v_lshrrev_b32 v7, 2, v2'); a('v_lshl_add_u32 v7, v3, 3, v7'); a('v_lshlrev_b32 v7, 5, v7'); a('v_and_b32 v15, 3, v1'); a('v_lshl_add_u32 v7, v15, 3, v7'); a(f'v_add_u32 v7, {lds}, v7')
        for kb in range(20):
            a(f'ds_read_b64_tr_b16 v[{136+4*kb}:{137+4*kb}], v7 offset:{1024*kb}')
            a(f'ds_read_b64_tr_b16 v[{138+4*kb}:{139+4*kb}], v7 offset:{1024*kb+128}')
        for kb in range(20):
            if kb<13:
                if kb==0 or True: a(f's_waitcnt lgkmcnt({min(15,2*(19-kb))})')
            else: a(f's_waitcnt lgkmcnt({2*(19-kb)})')
            a(f'v_mfma_f32_16x16x32_bf16 v[{acc}:{acc+3}], v[{136+4*kb}:{139+4*kb}], v[{56+4*kb}:{59+4*kb}], {"0" if kb==0 else "v[%d:%d]"%(acc,acc+3)}')
    def quad_store(s, d, so):
        a=s.a
        a('v_lshlrev_b32 v8, 6, v3'); a('v_lshl_add_u32 v8, v2, 4, v8')
        a('s_mov_b32 exec_lo, 0x000f000f'); a('s_mov_b32 exec_hi, 0x000f000f')
        a(f'buffer_store_dwordx3 v[{d}:{d+2}], v8, s[44:47], {so} offen sc1')
        a('s_mov_b64 exec, -1')

    def wave4(s):
        a=s.a
        a('L_w4:')
        a('s_mul_i32 s7, s6, 983040'); a('s_mul_i32 s56, s5, 384'); a('s_add_u32 s7, s7, s56')
        s.srd(8,22,7,79*12288+384)
        for ph in range(3):
            a(f'v_add_u32 v4, {64*ph}, v1'); a('v_mul_u32_u24 v5, 2731, v4'); a('v_lshrrev_b32 v5, 16, v5')
            a('v_mul_u32_u24 v6, 24, v5'); a('v_sub_u32 v4, v4, v6'); a('v_mul_u32_u24 v5, 12288, v5'); a(f'v_lshl_add_u32 v{8+ph}, v4, 4, v5')
        s.dma(8,[8,9,10],30,lambda p:(p//3)*98304,L_WQ)
        s.aux_barrier()
        a('v_lshrrev_b32 v7, 2, v1'); a('v_mul_u32_u24 v7, 384, v7'); a('v_and_b32 v15, 3, v1'); a('v_lshl_add_u32 v7, v15, 3, v7')
        if L_WQ: a(f'v_add_u32 v7, {L_WQ}, v7')
        a('v_lshlrev_b32 v8, 6, v3'); a('v_lshl_add_u32 v8, v15, 4, v8')
        for nt in range(12): a(f'v_mov_b32 v{160+6*nt}, s4')
        a('s_waitcnt vmcnt(0)')
        s.ts(1)
        for kb in range(5):
            for nt in range(12): a(f'ds_read_b64_tr_b16 v[{16+2*(12*kb+nt)}:{17+2*(12*kb+nt)}], v7 offset:{6144*kb+32*nt}')
        a('s_mul_i32 s56, s6, 1280'); a(f's_add_u32 s56, s56, {WS_H}')
        s.gather_masked([(136+4*kb,3,8,'s56',256*kb) for kb in range(5)],2,0x000f000f000f000f,1)
        s.ts(2)
        a('s_waitcnt lgkmcnt(0)')
        for kb in range(5):
            for nt in range(12):
                ac=156+6*nt; f=16+2*(12*kb+nt)
                a(f'v_mfma_f32_16x16x16_bf16 v[{ac}:{ac+3}], v[{f}:{f+1}], v[{136+4*kb}:{137+4*kb}], {"0" if kb==0 else "v[%d:%d]"%(ac,ac+3)}')
        a('v_mul_u32_u24 v9, 12288, v2'); a('v_lshl_add_u32 v9, v3, 4, v9')
        a('s_mul_i32 s56, s5, 49152'); a('s_mul_i32 s7, s6, 1536'); a('s_add_u32 s56, s56, s7'); a(f's_add_u32 s56, s56, {WS_QP}')
        a('s_mov_b32 exec_lo, 0x000f000f'); a('s_mov_b32 exec_hi, 0x000f000f')
        for nt in range(12):
            ac=156+6*nt
            a(f'buffer_store_dwordx3 v[{ac+2}:{ac+4}], v9, s[44:47], s56 offen offset:{768+64*nt} sc1')
        for nt in range(12): a(f'v_mov_b32 v{156+6*nt+2}, s4')
        for nt in range(12):
            ac=156+6*nt
            a(f'buffer_store_dwordx3 v[{ac}:{ac+2}], v9, s[44:47], s56 offen offset:{64*nt} sc1')
        s.ts(3)
        a('s_lshr_b32 s7, s6, 1'); a('s_lshl_b32 s56, s5, 2'); a('s_add_u32 s7, s7, s56'); a('s_mul_i32 s56, s7, 12288'); a(f's_add_u32 s56, s56, {WS_QP}')
        a('s_mov_b64 exec, -1')
        a('v_lshlrev_b32 v8, 4, v1')
        for i in range(1,4): a(f'v_add_u32 v{8+i}, {3072*i}, v8')
        a('s_mov_b32 exec_hi, 0xffff')
        loads=[(16+4*(2*p+rp),3,8+p//2,'s56',(p&1)*1536+rp*768) for p in range(8) for rp in range(2)]
        s.gather_full(loads,2,1)
        for p in range(1,8):
            for rp in range(2):
                for e in range(2): a(f'v_add_f32 v{16+4*rp+e}, v{16+4*rp+e}, v{16+4*(2*p+rp)+e}')
        a('v_cvt_pk_bf16_f32 v24, v16, v17'); a('v_cvt_pk_bf16_f32 v25, v20, v21')
        a('v_lshlrev_b32 v8, 3, v1'); a(f'v_add_u32 v8, {L_Q}, v8')
        a('ds_write_b64 v8, v[24:25]'); a('s_waitcnt lgkmcnt(0)')
        s.lds_inc(F_Q)
        s.ts(4)
        a('s_branch L_prep')

    def wave5(s):
        a=s.a
        a('L_w5:')
        a('s_cmp_ge_u32 s2, 160'); a('s_cbranch_scc1 L_w5g')
        s.load_c()
        a('s_lshl_b32 s7, s2, 5'); a('s_add_u32 s7, s7, 2560')
        s.srd(8,36,7,639*7680+32)
        s.strip_voff(8,7680)
        s.dma(8,[8],20,lambda p:p*32*7680,L_U0)
        s.aux_barrier()
        a('s_waitcnt vmcnt(20)')
        s.silu_to_lds(L_SC5)
        a('s_waitcnt vmcnt(0) lgkmcnt(0)')
        s.mod_tile(L_U0,232)
        a('v_mov_b32 v238, s4')
        a('s_lshl_b32 s56, s2, 8'); a(f's_add_u32 s56, s56, {WS_MOD}')
        a('v_cvt_pk_bf16_f32 v236, v232, v233'); a('v_cvt_pk_bf16_f32 v237, v234, v235')
        s.quad_store(236,'s56')
        s.ts(1)
        a('s_branch L_prep')
        a('L_w5g:')
        s.aux_barrier()
        s.gu_dma(28,L_U0)
        a('s_branch L_prep')
    def gu_dma(s, ptr, lds):
        a=s.a
        a('s_sub_u32 s7, s2, 160'); a('s_lshl_b32 s7, s7, 5')
        s.srd(8,ptr,7,639*3072+32)
        s.strip_voff(8,3072)
        s.dma(8,[8],20,lambda p:p*32*3072,lds,pace=s.DAUX)
        a('s_waitcnt vmcnt(0)')
        s.lds_inc(F_G)
    def wave6(s):
        a=s.a
        a('L_w6:')
        a('s_cmp_ge_u32 s2, 40'); a('s_cbranch_scc1 L_w6b')
        s.load_c()
        s.srd(12,16,None,5120)
        a('v_and_b32 v15, 3, v1'); a('v_mul_u32_u24 v9, 1280, v15'); a('v_lshrrev_b32 v10, 2, v1'); a('v_lshl_add_u32 v10, v10, 4, v9')
        for m in range(5): a(f'buffer_load_dwordx4 v[{36+4*m}:{39+4*m}], v10, s[12:15], 0 offen offset:{256*m}')
        a('v_lshl_add_u32 v9, v3, 3, v9'); a('s_lshl_b32 s7, s2, 5')
        a('buffer_load_dwordx2 v[240:241], v9, s[12:15], s7 offen')
        s.srd(8,36,7,639*7680+1280+32)
        s.strip_voff(8,7680)
        s.dma(8,[8],20,lambda p:p*32*7680,L_U1)
        s.dma(8,[8],20,lambda p:p*32*7680+1280,L_U2)
        s.aux_barrier()
        a('s_waitcnt vmcnt(46)')
        s.ts(1)
        s.silu_to_lds(L_SC6)
        a('s_waitcnt vmcnt(40)')
        nmu,rs=s.ln_stats([36+i for i in range(20)],216)
        a('s_waitcnt vmcnt(20) lgkmcnt(0)')
        s.ts(2)
        s.mod_tile(L_U1,232)
        a('s_waitcnt vmcnt(0)')
        s.ts(3)
        s.mod_tile(L_U2,236)
        a('v_cvt_pk_bf16_f32 v242, v232, v233'); a('v_cvt_pk_bf16_f32 v243, v234, v235')
        s.unpack(242,244,245); s.unpack(243,246,247)
        a('v_cvt_pk_bf16_f32 v242, v236, v237'); a('v_cvt_pk_bf16_f32 v243, v238, v239')
        s.one_plus(242,243,248)
        s.ln_apply(240,241,nmu,rs,248,244,252,253,232)
        a('v_mov_b32 v254, s4')
        a('s_lshl_b32 s56, s2, 8'); a(f's_add_u32 s56, s56, {WS_H}')
        s.quad_store(252,'s56')
        s.ts(4)
        a('s_branch L_prep')
        a('L_w6b:')
        s.aux_barrier()
        a('s_cmp_lt_u32 s2, 160'); a('s_cbranch_scc1 L_prep')
        s.gu_dma(30,L_U1)
        a('s_branch L_prep')
    def wave7(s):
        a=s.a
        a('L_w7:')
        s.aux_barrier()
        a('s_mul_i32 s7, s5, 245760'); a('s_mul_i32 s56, s6, 160'); a('s_add_u32 s7, s7, s56')
        s.srd(8,24,7,191*1280+160)
        for ph in range(5):
            a(f'v_add_u32 v4, {64*ph}, v1'); a('v_mul_u32_u24 v5, 6554, v4'); a('v_lshrrev_b32 v5, 16, v5')
            a('v_mul_u32_u24 v6, 10, v5'); a('v_sub_u32 v4, v4, v6'); a('v_mul_u32_u24 v5, 1280, v5'); a(f'v_lshl_add_u32 v{16+ph}, v4, 4, v5')
        s.dma(8,[16,17,18,19,20],30,lambda p:(p//5)*32*1280,L_WO,pace=s.DAUX)
        a('s_waitcnt vmcnt(0)')
        s.lds_inc(F_WO)
        a('s_cmp_lt_u32 s2, 160'); a('s_cbranch_scc1 L_w7r')
        a('s_sub_u32 s7, s2, 160'); a('s_mul_i32 s7, s7, 20480')
        s.srd(8,32,7,20480)
        a('v_lshlrev_b32 v8, 4, v1')
        s.dma(8,[8],20,lambda p:p*1024,L_U2,pace=s.DAUX)
        a('s_waitcnt vmcnt(0)')
        s.lds_inc(F_G)
        a('s_branch L_prep')
        a('L_w7r:')
        s.srd(12,16,None,5120)
        a('v_and_b32 v15, 3, v1'); a('v_lshlrev_b32 v8, 4, v15')
        a('v_mul_u32_u24 v9, 1280, v15'); a('v_and_b32 v10, 4, v1'); a('v_add_u32 v9, v9, v10'); a('v_and_b32 v11, 1, v3'); a('v_lshl_add_u32 v9, v11, 1, v9')
        a('s_lshl_b32 s7, s2, 3')
        a('buffer_load_ushort v154, v9, s[12:15], s7 offen')
        a('s_lshl_b32 s56, s2, 6'); a(f's_add_u32 s56, s56, {WS_MOD}'); a(f's_add_u32 s57, s56, {3*10240}')
        s.gather_masked([(176,3,8,'s56',0),(180,3,8,'s57',0)],2,(1<<64)-1,8)
        a('v_cmp_ne_u32 vcc, 0, v10')
        a('v_cndmask_b32 v176, v176, v177, vcc'); a('v_cndmask_b32 v180, v180, v181, vcc')
        a('v_lshlrev_b32 v154, 16, v154')
        s.unpack(176,152,177); s.unpack(180,153,181)
        a('v_cmp_ne_u32 vcc, 0, v11')
        a('v_cndmask_b32 v152, v152, v177, vcc'); a('v_cndmask_b32 v153, v153, v181, vcc')
    def prep_and_tail(s):
        a=s.a
        a('L_prep:')
        s.lds_wait(F_WO,'lg',0,8)
        a('v_lshrrev_b32 v7, 2, v2'); a('v_mul_u32_u24 v8, 6, v3'); a('v_add_u32 v7, v7, v8'); a('v_mul_u32_u24 v7, 160, v7')
        a('v_and_b32 v15, 3, v1'); a('v_lshl_add_u32 v7, v15, 3, v7')
        a('s_sub_u32 s3, s3, 4')
        a('s_lshl_b32 s7, s3, 5'); a(f's_add_u32 s7, s7, {L_WO}'); a('v_add_u32 v7, s7, v7')
        for t in range(2):
            for kb in range(8):
                f=16+32*t+4*kb
                a(f'ds_read_b64_tr_b16 v[{f}:{f+1}], v7 offset:{3840*kb+128*t}')
                a(f'ds_read_b64_tr_b16 v[{f+2}:{f+3}], v7 offset:{3840*kb+128*t+640}')
        a('s_waitcnt lgkmcnt(0)')
        for t in range(2):
            for kb in range(8): a(f'v_mov_b32 v{16+32*t+4*kb+3}, 0')
        a('s_cmp_lt_u32 s2, 160'); a('s_cbranch_scc1 L_tail')
        s.lds_wait(F_G,'ge',3,8)
        a('v_lshrrev_b32 v7, 2, v2'); a('v_lshl_add_u32 v7, v3, 4, v7'); a('v_lshlrev_b32 v7, 5, v7'); a('v_and_b32 v15, 3, v1'); a('v_lshl_add_u32 v7, v15, 3, v7')
        a('s_lshl_b32 s7, s3, 11'); a(f's_add_u32 s7, s7, {L_U0}'); a('v_add_u32 v7, s7, v7')
        for i in range(3):
            for sb in range(4):
                a(f'ds_read_b64_tr_b16 v[{80+8*i+2*sb}:{81+8*i+2*sb}], v7 offset:{8192*i+128*sb}')
                a(f'ds_read_b64_tr_b16 v[{104+8*i+2*sb}:{105+8*i+2*sb}], v7 offset:{8192*i+128*sb+(L_U1-L_U0)}')
        a('v_lshrrev_b32 v7, 2, v1'); a('v_mul_u32_u24 v7, 1280, v7'); a('v_lshl_add_u32 v7, v15, 3, v7')
        a('s_lshl_b32 s7, s3, 7'); a(f's_add_u32 s7, s7, {L_U2}'); a('v_add_u32 v7, s7, v7')
        for i in range(3):
            for sb in range(4): a(f'ds_read_b64_tr_b16 v[{128+8*i+2*sb}:{129+8*i+2*sb}], v7 offset:{512*i+32*sb}')
        a('v_lshlrev_b32 v8, 4, v1')
        a('s_lshl_b32 s56, s3, 10'); a(f's_add_u32 s56, s56, {WS_MOD+10240}'); a('s_add_u32 s57, s56, 10240')
        a('s_cmp_lt_u32 s3, 2'); a('s_cselect_b32 s7, 2, 1'); a('s_lshl_b32 s7, s7, 12'); a('v_add_u32 v9, 4096, v8'); a('v_add_u32 v10, s7, v8')
        s.gather_masked([(176+4*i,3,8+i,'s56',0) for i in range(3)]+[(188+4*i,3,8+i,'s57',0) for i in range(3)],2,(1<<64)-1,8)
        for i in range(3):
            s.unpack(176+4*i,164+4*i,165+4*i); s.unpack(177+4*i,166+4*i,167+4*i)
            s.one_plus(188+4*i,189+4*i,152+4*i)
        a('v_lshrrev_b32 v9, 2, v2')
        for sb in range(4):
            a(f'v_cmp_eq_u32 vcc, {sb}, v9'); a(f'v_cndmask_b32 v{248+sb}, 0, -1, vcc')
        a('s_waitcnt lgkmcnt(0)')
        a('L_tail:')
        a('v_lshlrev_b32 v8, 10, v2'); a('v_lshl_add_u32 v9, v3, 4, v8')
        a('v_and_b32 v10, 1, v2'); a('v_lshlrev_b32 v10, 2, v10'); a('v_lshrrev_b32 v11, 1, v2'); a('v_add_u32 v10, v10, v11'); a('v_lshlrev_b32 v10, 4, v10'); a('v_lshl_add_u32 v10, v3, 12, v10')
        a('s_lshl_b32 s56, s5, 13'); a(f's_add_u32 s56, s56, {WS_OP}')
        a('s_mul_i32 s57, s6, 20'); a('s_lshl_b32 s7, s3, 2'); a('s_add_u32 s57, s57, s7'); a('s_lshl_b32 s57, s57, 12'); a('s_lshl_b32 s7, s5, 7'); a('s_add_u32 s57, s57, s7'); a(f's_add_u32 s57, s57, {WS_WR}')
        a('v_mov_b32 v234, s4'); a('v_mov_b32 v242, s4')
        a('v_and_b32 v11, 1, v1'); a('v_cmp_ne_u32 s[78:79], 0, v11')
        s.ts(5)
        s.lds_wait(F_CNT,'ge',4,4)
        s.ts(6)
        s.gather_masked([(208,4,8,'s56',512)]+[(176+4*kb,4,9,'s56',64*kb) for kb in range(8)],3,0x00ff00ff00ff00ff,1)
        s.ts(7)
        for kb in range(8): a(f'v_mov_b32 v{179+4*kb}, 0')
        for kb in range(8):
            a(f'v_mfma_f32_16x16x32_bf16 v[224:227], v[{16+4*kb}:{19+4*kb}], v[{176+4*kb}:{179+4*kb}], {"0" if kb==0 else "v[224:227]"}')
            if kb==0:
                a('v_max_f32_dpp v212, v208, v208 quad_perm:[1,0,3,2] row_mask:0xf bank_mask:0xf')
                a('v_sub_f32 v212, v208, v212'); a('v_exp_f32 v212, v212')
            if kb==2:
                a('v_mul_f32 v212, v212, v209')
            if kb==4:
                a('v_add_f32_dpp v213, v212, v212 quad_perm:[1,0,3,2] row_mask:0xf bank_mask:0xf'); a('v_rcp_f32 v213, v213')
            if kb==6:
                a('v_mul_f32 v212, v212, v213')
        def wpub(ac, gr, imm_add):
            for r in range(4): a(f'v_mul_f32 v{ac+r}, v212, v{ac+r}')
            for r in range(4): a(f'v_add_f32_dpp v{ac+r}, v{ac+r}, v{ac+r} quad_perm:[1,0,3,2] row_mask:0xf bank_mask:0xf')
            a(f'v_cndmask_b32 v{gr}, v{ac}, v{ac+2}, s[78:79]'); a(f'v_cndmask_b32 v{gr+1}, v{ac+1}, v{ac+3}, s[78:79]')
            a('s_mov_b32 exec_lo, 0x00ff00ff'); a('s_mov_b32 exec_hi, 0x00ff00ff')
            a(f'buffer_store_dwordx3 v[{gr}:{gr+2}], v10, s[44:47], s57 offen sc1')
            a('s_mov_b64 exec, -1')
        a('s_cmp_lg_u32 s3, 0'); a('s_cbranch_scc1 L_w1t')
        for kb in range(8):
            a(f'v_mfma_f32_16x16x32_bf16 v[228:231], v[{48+4*kb}:{51+4*kb}], v[{176+4*kb}:{179+4*kb}], {"0" if kb==0 else "v[228:231]"}')
        wpub(224,232,0)
        a('s_add_u32 s57, s57, 65536')
        wpub(228,240,0)
        a('s_branch L_wdone')
        a('L_w1t:')
        a('s_nop 7')
        wpub(224,232,0)
        a('L_wdone:')
        s.ts(8)
        a('s_cmp_ge_u32 s2, 160'); a('s_cbranch_scc1 L_G')
        a('s_cmp_lg_u32 s3, 3'); a('s_cbranch_scc1 L_auxend')
        a('v_lshlrev_b32 v8, 4, v1')
        a('s_lshl_b32 s56, s2, 12'); a(f's_add_u32 s56, s56, {WS_WR}')
        a('s_lshl_b32 s57, s2, 6'); a(f's_add_u32 s57, s57, {WS_X1}')
        s.gather_masked([(176+4*k,3,8,'s56',1024*k) for k in range(4)],2,(1<<64)-1,1)
        s.ts(9)
        for e in range(2):
            a(f'v_add_f32 v{176+e}, v{176+e}, v{180+e}'); a(f'v_add_f32 v{184+e}, v{184+e}, v{188+e}')
        for e in range(2): a(f'v_add_f32 v{176+e}, v{176+e}, v{184+e}')
        s.red8_pair(176,177,178)
        s.rnd1(176); a('v_mul_f32 v176, v152, v176'); s.rnd1(176); a('v_add_f32 v155, v154, v176')
        a('v_mov_b32 v176, v155'); a('v_mov_b32 v177, v155'); a('v_permlane16_swap_b32 v176, v177'); a('v_cvt_pk_bf16_f32 v232, v176, v177')
        a('v_mov_b32_dpp v233, v232 row_shl:4 row_mask:0xf bank_mask:0xf')
        a('s_mov_b64 exec, 15')
        a('buffer_store_dwordx3 v[232:234], v8, s[44:47], s57 offen sc1')
        a('s_mov_b64 exec, -1')
        s.rnd1(155)
        a('s_mul_i32 s56, s2, 12288'); a(f's_add_u32 s56, s56, {WS_DF}')
        a('v_add_u32 v9, 4096, v8'); a('v_add_u32 v10, 8192, v8')
        s.srd(12,38,None,5120)
        a('v_and_b32 v15, 3, v1'); a('v_mul_u32_u24 v11, 1280, v15'); a('v_and_b32 v15, 4, v1'); a('v_add_u32 v11, v11, v15'); a('s_lshl_b32 s57, s2, 3')
        s.gather_full([(176+4*k,3,8+k//4,'s56',1024*(k%4)) for k in range(12)],2,1)
        s.ts(2)
        for st in (1,2,4,8):
            for k in range(0,12,2*st):
                if k+st<12:
                    for e in range(2): a(f'v_add_f32 v{176+4*k+e}, v{176+4*k+e}, v{176+4*(k+st)+e}')
        s.red8_pair(176,177,178)
        s.rnd1(176); a('v_mul_f32 v176, v153, v176'); s.rnd1(176); a('v_add_f32 v176, v155, v176')
        a('v_mov_b32 v177, v176'); a('v_permlane16_swap_b32 v176, v177'); a('v_cvt_pk_bf16_f32 v176, v176, v177')
        a('s_mov_b64 exec, 0xff')
        a('buffer_store_dword v176, v11, s[12:15], s57 offen')
        a('s_cmp_lg_u32 s2, 0'); a('s_cbranch_scc1 L_auxend')
        a('s_mov_b64 exec, 1'); a('v_mov_b32 v8, 0')
        a('buffer_store_dword v234, v8, s[44:47], 0 offen')
        a('L_auxend:')
        a('s_add_u32 s3, s3, 4')
        s.end()
        a('L_G:')
        a('v_lshlrev_b32 v8, 7, v1')
        a(f's_mov_b32 s56, {WS_WR}')
        s.gather_masked([(176,3,8,'s56',0)],2,0xffffffff,2)
        s.ts(9)
        a('v_lshlrev_b32 v8, 4, v1'); a('v_add_u32 v9, 4096, v8'); a('v_add_u32 v10, 8192, v8')
        a(f's_mov_b32 s56, {WS_X1}')
        s.gather_full([(176+4*m,3,8+m//4,'s56',1024*(m%4)) for m in range(10)],2,1)
        s.ts(2)
        nmu,rs=s.ln_stats([176+4*m+e for m in range(10) for e in range(2)],216)
        for ax in range(4):
            nx=f'L_gm{ax+1}'
            if ax<3: a(f's_cmp_lg_u32 s3, {ax}'); a(f's_cbranch_scc1 {nx}')
            ms=[m for m in (ax,ax+4,ax+8) if m<10]
            for i,m in enumerate(ms):
                s.ln_apply(176+4*m,177+4*m,nmu,rs,152+4*i,164+4*i,224,225,228)
                for sb in range(4):
                    a(f'v_and_b32 v{232+8*(i&1)+2*sb}, v{248+sb}, v224'); a(f'v_and_b32 v{233+8*(i&1)+2*sb}, v{248+sb}, v225')
                for sb in range(4):
                    first=(i==0 and sb==0); B=232+8*(i&1)+2*sb
                    a(f'v_mfma_f32_16x16x16_bf16 v[16:19], v[{80+8*i+2*sb}:{81+8*i+2*sb}], v[{B}:{B+1}], {"0" if first else "v[16:19]"}')
                    a(f'v_mfma_f32_16x16x16_bf16 v[20:23], v[{104+8*i+2*sb}:{105+8*i+2*sb}], v[{B}:{B+1}], {"0" if first else "v[20:23]"}')
            if ax<3: a('s_branch L_gred'); a(f'{nx}:')
        a('L_gred:')
        a(f'v_add_u32 v9, {L_GR}, v8'); a('s_lshl_b32 s7, s3, 10'); a('v_add_u32 v10, s7, v9')
        a('s_nop 7')
        a('ds_write_b128 v10, v[16:19]'); a('ds_write_b128 v10, v[20:23] offset:4096')
        a('s_waitcnt lgkmcnt(0)'); a('s_barrier')
        for t in range(2):
            for w in range(4): a(f'ds_read_b128 v[{24+16*t+4*w}:{27+16*t+4*w}], v9 offset:{4096*t+1024*w}')
        a('v_and_b32 v11, 12, v2'); a('v_add_u32 v11, v11, v3'); a('v_mul_u32_u24 v11, 12288, v11'); a('v_and_b32 v15, 3, v1'); a('v_lshl_add_u32 v11, v15, 4, v11')
        a('s_mul_i32 s56, s3, 196608'); a('s_sub_u32 s7, s2, 160'); a('s_lshl_b32 s7, s7, 7'); a('s_add_u32 s56, s56, s7'); a(f's_add_u32 s56, s56, {WS_DF}')
        for i in range(3): a(f'v_mov_b32 v{64+6*i+4}, s4')
        for t in range(2):
            a(f's_waitcnt lgkmcnt({4-4*t})')
            b=24+16*t
            for r in range(4): a(f'v_add_f32 v{b+r}, v{b+r}, v{b+4+r}'); a(f'v_add_f32 v{b+8+r}, v{b+8+r}, v{b+12+r}')
            for r in range(4): a(f'v_add_f32 v{b+r}, v{b+r}, v{b+8+r}')
        for ro in (4,8):
            for t in range(2):
                for r in range(4): a(f'v_add_f32_dpp v{24+16*t+r}, v{24+16*t+r}, v{24+16*t+r} row_ror:{ro} row_mask:0xf bank_mask:0xf')
        a('v_cvt_pk_bf16_f32 v28, v24, v25'); a('v_cvt_pk_bf16_f32 v29, v26, v27'); a('v_cvt_pk_bf16_f32 v30, v40, v41'); a('v_cvt_pk_bf16_f32 v31, v42, v43')
        s.unpack(28,24,25); s.unpack(29,26,27); s.unpack(30,40,41); s.unpack(31,42,43)
        k0=0.7978845608028654; c0=-2*k0*LOG2E; c1=c0*0.044715
        a(f's_mov_b32 s7, {fhex(c1)}'); a(f'v_mov_b32 v36, {fhex(c0)}')
        for r in range(4): a(f'v_mul_f32 v{32+r}, v{24+r}, v{24+r}')
        for r in range(4): a(f'v_fma_f32 v{32+r}, v{32+r}, s7, v36')
        for r in range(4): a(f'v_mul_f32 v{32+r}, v{32+r}, v{24+r}')
        for r in range(4): a(f'v_exp_f32 v{32+r}, v{32+r}')
        for r in range(4): a(f'v_add_f32 v{32+r}, 1.0, v{32+r}')
        for r in range(4): a(f'v_rcp_f32 v{32+r}, v{32+r}')
        for r in range(4): a(f'v_mul_f32 v{24+r}, v{24+r}, v{32+r}')
        a('v_cvt_pk_bf16_f32 v28, v24, v25'); a('v_cvt_pk_bf16_f32 v29, v26, v27'); s.unpack(28,24,25); s.unpack(29,26,27)
        for r in range(4): a(f'v_mul_f32 v{24+r}, v{24+r}, v{40+r}')
        a('v_cvt_pk_bf16_f32 v28, v24, v25'); a('v_cvt_pk_bf16_f32 v29, v26, v27')
        for sb in range(4):
            a(f'v_and_b32 v{48+2*sb}, v{248+sb}, v28'); a(f'v_and_b32 v{49+2*sb}, v{248+sb}, v29')
        for sb in range(4):
            for i in range(3):
                ac=64+6*i
                a(f'v_mfma_f32_16x16x16_bf16 v[{ac}:{ac+3}], v[{128+8*i+2*sb}:{129+8*i+2*sb}], v[{48+2*sb}:{49+2*sb}], {"0" if sb==0 else "v[%d:%d]"%(ac,ac+3)}')
        a('s_add_u32 s57, s56, 786432'); a('s_add_u32 s58, s56, 1572864')
        so=['s56','s57','s58']
        for i in range(2): a(f'buffer_store_dwordx3 v[{64+6*i+2}:{64+6*i+4}], v11, s[44:47], {so[i]} offen offset:64 sc1')
        a('s_cmp_ge_u32 s3, 2'); a('s_cbranch_scc1 L_g2')
        a(f'buffer_store_dwordx3 v[78:80], v11, s[44:47], s58 offen offset:64 sc1')
        a('v_mov_b32 v78, s4')
        a(f'buffer_store_dwordx3 v[76:78], v11, s[44:47], s58 offen sc1')
        a('L_g2:')
        a('s_nop 1')
        for i in range(2): a(f'v_mov_b32 v{64+6*i+2}, s4')
        for i in range(2): a(f'buffer_store_dwordx3 v[{64+6*i}:{64+6*i+2}], v11, s[44:47], {so[i]} offen sc1')
        a('s_add_u32 s3, s3, 4')
        s.end()

    def build(s):
        a=s.a
        a(f'{NAME}_kernel:')
        s.ts(0)
        a('s_cmp_ge_u32 s2, 256'); a('s_cbranch_scc1 L_exit')
        a('s_load_dwordx16 s[16:31], s[0:1], 0'); a('s_load_dwordx8 s[32:39], s[0:1], 64'); a('s_load_dwordx4 s[40:43], s[0:1], 96')
        a('v_lshrrev_b32 v2, 6, v0'); a('v_and_b32 v1, 63, v0'); a('v_readfirstlane_b32 s3, v2')
        a('s_lshr_b32 s5, s2, 3'); a('s_and_b32 s6, s2, 7')
        a(f's_mov_b32 s52, {TIMEOUT}'); a('s_mov_b32 s53, 0xffff0000'); a(f's_mov_b32 s54, {fhex(SCALE)}'); a(f's_mov_b32 s55, {fhex(LOG2E)}');
        a(f'v_mov_b32 v14, {L_FL}')
        a('v_and_b32 v2, 15, v1'); a('v_lshrrev_b32 v3, 4, v1')
        if s.TS:
            for i in range(1,11): a(f's_mov_b64 s[{80+2*i}:{81+2*i}], 0')
        a('s_waitcnt lgkmcnt(0)')
        a('s_load_dword s4, s[42:43], 0')
        a('s_mov_b32 s26, 0x3f803f80')
        s.srd(44,42,None,WS_SIZE)
        a('s_cmp_lt_u32 s3, 4'); a('s_cbranch_scc1 L_stream')
        a('s_cmp_eq_u32 s3, 4'); a('s_cbranch_scc1 L_w4')
        a('s_cmp_eq_u32 s3, 5'); a('s_cbranch_scc1 L_w5')
        a('s_cmp_eq_u32 s3, 6'); a('s_cbranch_scc1 L_w6')
        a('s_branch L_w7')
        a('L_timeout:')
        a('s_mov_b64 exec, -1')
        a('L_exit:')
        a('s_endpgm')
        s.stream(); s.wave4(); s.wave5(); s.wave6(); s.wave7(); s.prep_and_tail()
        ref=open('cdna_kernels/'+NAME+'.s.ref').read().split('\n')
        head=[l for l in ref if l.startswith(';') and '@launch' not in l]
        out='\n'.join(head)+f'\n; @launch grid=(256,1,1) block=(512,1,1) lds={LDS_BYTES}\n'
        out+=f'.amdgcn_target "amdgcn-amd-amdhsa--gfx950"\n.text\n.globl {NAME}_kernel\n.p2align 8\n.type {NAME}_kernel,@function\n'
        out+=a.text()
        out+=f'''.section .rodata,"a"
.p2align 6
.amdhsa_kernel {NAME}_kernel
  .amdhsa_next_free_vgpr 256
  .amdhsa_next_free_sgpr 102
  .amdhsa_accum_offset 256
  .amdhsa_group_segment_fixed_size 0
  .amdhsa_kernarg_size 112
  .amdhsa_user_sgpr_count 2
  .amdhsa_user_sgpr_kernarg_segment_ptr 1
  .amdhsa_system_sgpr_workgroup_id_x 1
  .amdhsa_float_denorm_mode_32 3
.end_amdhsa_kernel
'''
        return out
if __name__=='__main__':
    import argparse
    p=argparse.ArgumentParser(); p.add_argument('-o',default='cdna_kernels/'+NAME+'.s'); p.add_argument('--ts',action='store_true'); p.add_argument('-D',type=int,default=9); p.add_argument('--daux',type=int,default=4); p.add_argument('--kpol',default='nt'); p.add_argument('--vpol',default='nt'); p.add_argument('--wpol',default='nt')
    x=p.parse_args()
    g=G(D=x.D,TS=x.ts,DAUX=x.daux,kpol=x.kpol,vpol=x.vpol,ntw=x.wpol); open(x.o,'w').write(g.build()); print('pads',g.a.pads,'ins',len(g.a.L))
```

```python
import sys, struct
from asmlib import Asm
NAME='adaLN_cond__gqa_block_cached__geglu_ffn__decode'
def fhex(f): return '0x%08x'%struct.unpack('<I',struct.pack('<f',f))[0]
LOG2E=1.4426950408889634
SCALE=192**-0.5
WS_MOD=0x1000; WS_X1=0x10000; WS_OP=0x20000; WS_WR=0x60000; WS_QP=0x100000; WS_DF=0x280000; WS_TS=0x500000; WS_SIZE=0x600000
L_WQ=0x0; L_X=0x7800; L_U0=L_X; L_U1=L_X+20480; L_U2=L_X+40960; L_SC=0x1B800; L_MR=0x1CC00; L_OP=0x1D400; L_GR=0x1EC00; L_ST=0x1F400; L_Q=0x1F500; L_ML=0x1F700; L_FL=0x1F740; LDS_BYTES=0x1F800
F_CNT=0; F_Q=4; F_WO=8; F_G=12; F_MOD=16; F_RING=20; F_PROG=24
M_GA=20480; M_SB=30720; M_CB=40960; M_GB=51200
TIMEOUT=1<<21

class G:
    def __init__(s, D=9, TS=False, DAUX=4, ntw='nt', kpol='nt', vpol='nt', gpol='', dry=True):
        s.gpol=gpol; s.dry=dry
        s.pol=(kpol,vpol)
        s.a=Asm(); s.D=D; s.TS=TS; s.DAUX=DAUX; s.ntw=ntw; s.uid=0
    def lab(s,p):
        s.uid+=1; return f'L_{p}_{s.uid}'
    def ts(s,i):
        if s.TS: s.a(f's_memrealtime s[{80+2*i}:{81+2*i}]')
    def ts_flush(s):
        a=s.a
        if not s.TS: return
        a('s_waitcnt lgkmcnt(0)')
        a('s_lshl_b32 s7, s2, 3'); a('s_add_u32 s7, s7, s3'); a('s_lshl_b32 s7, s7, 7'); a(f's_add_u32 s7, s7, {WS_TS}')
        a('s_mov_b64 exec, 1')
        a('v_mov_b32 v1, 0')
        for i in range(0,11):
            a(f'v_mov_b32 v2, s{80+2*i}'); a(f'v_mov_b32 v3, s{81+2*i}')
            a(f'buffer_store_dwordx2 v[2:3], v1, s[44:47], s7 offen offset:{8*i}')
        a('s_getreg_b32 s56, hwreg(HW_REG_XCC_ID)'); a('v_mov_b32 v2, s56')
        a('buffer_store_dword v2, v1, s[44:47], s7 offen offset:88')
    def end(s):
        s.ts(10); s.ts_flush(); s.a('s_endpgm')
    def srd(s, d, ptr, off_sgpr, size):
        a=s.a
        if off_sgpr is None:
            a(f's_mov_b32 s{d}, s{ptr}'); a(f's_mov_b32 s{d+1}, s{ptr+1}')
        else:
            a(f's_add_u32 s{d}, s{ptr}, s{off_sgpr}'); a(f's_addc_u32 s{d+1}, s{ptr+1}, 0')
        a(f's_mov_b32 s{d+2}, {size}'); a(f's_mov_b32 s{d+3}, 0x20000')
    def timeout(s, loop, sleep, dn=None):
        a=s.a
        if dn is not None: a('s_cmp_eq_u32 s27, 0'); a(f's_cbranch_scc1 {dn}')
        a('s_sub_u32 s52, s52, 1'); a('s_cbranch_scc1 L_timeout')
        if sleep: a(f's_sleep {sleep}')
        a(f's_branch {loop}')
    def lds_wait(s, off, cmpop, val, sleep, vt=15, dry=False):
        a=s.a; lp=s.lab('lw'); dn=s.lab('lwd')
        a(f'{lp}:')
        a(f'ds_read_b32 v{vt}, v14 offset:{off}'); a('s_waitcnt lgkmcnt(0)')
        a(f'v_readfirstlane_b32 s7, v{vt}'); a(f's_cmp_{cmpop}_u32 s7, {val}'); a(f's_cbranch_scc1 {dn}')
        s.timeout(lp,sleep,dn if dry else None); a(f'{dn}:')
    def lds_inc(s, off):
        a=s.a
        a('s_mov_b64 exec, 1'); a('v_mov_b32 v15, 1'); a(f'ds_add_u32 v14, v15 offset:{off}'); a('s_mov_b64 exec, -1')
    def gather_masked(s, loads, tagpos, init, sleep, dry=False):
        a=s.a; lp=s.lab('gm'); dn=s.lab('gmd'); assert len(loads)<=9
        for k in range(len(loads)):
            ini=init[k] if isinstance(init,list) else init
            lo,hi=ini&0xffffffff, ini>>32
            a(f's_mov_b32 s{60+2*k}, 0x{lo:x}'); a(f's_mov_b32 s{61+2*k}, 0x{hi:x}')
        a(f'{lp}:')
        for k,(d,n,vo,so,im) in enumerate(loads):
            a(f's_mov_b64 exec, s[{60+2*k}:{61+2*k}]')
            a(f'buffer_load_dwordx{n} v[{d}:{d+n-1}], v{vo}, s[44:47], {so} offen offset:{im} sc1')
        for k,(d,n,vo,so,im) in enumerate(loads):
            a(f's_waitcnt vmcnt({len(loads)-1-k})')
            a(f's_mov_b64 exec, s[{60+2*k}:{61+2*k}]')
            a(f'v_cmp_ne_u32 s[{60+2*k}:{61+2*k}], s4, v{d+tagpos}')
        a('s_mov_b64 exec, -1')
        if len(loads)==1: a('s_or_b64 s[58:59], s[60:61], s[60:61]')
        else:
            a('s_or_b64 s[58:59], s[60:61], s[62:63]')
            for k in range(2,len(loads)): a(f's_or_b64 s[58:59], s[58:59], s[{60+2*k}:{61+2*k}]')
        a(f's_cbranch_scc0 {dn}')
        s.timeout(lp,sleep,dn if dry else None); a(f'{dn}:')
    def gather_full(s, loads, tagpos, sleep, t0=12, t1=13, dry=False):
        a=s.a; lp=s.lab('gf'); dn=s.lab('gfd')
        a(f'{lp}:')
        for k,(d,n,vo,so,im) in enumerate(loads):
            a(f'buffer_load_dwordx{n} v[{d}:{d+n-1}], v{vo}, s[44:47], {so} offen offset:{im} sc1')
        tg=[d+tagpos for (d,n,vo,so,im) in loads]; n=len(tg)
        a(f's_waitcnt vmcnt({n-2})')
        a(f'v_min_u32 v{t0}, v{tg[0]}, v{tg[1]}'); a(f'v_max_u32 v{t1}, v{tg[0]}, v{tg[1]}')
        k=2
        while k<n:
            if k+1<n:
                a(f's_waitcnt vmcnt({n-2-k})')
                a(f'v_min3_u32 v{t0}, v{t0}, v{tg[k]}, v{tg[k+1]}'); a(f'v_max3_u32 v{t1}, v{t1}, v{tg[k]}, v{tg[k+1]}'); k+=2
            else:
                a('s_waitcnt vmcnt(0)')
                a(f'v_min_u32 v{t0}, v{t0}, v{tg[k]}'); a(f'v_max_u32 v{t1}, v{t1}, v{tg[k]}'); k+=1
        a(f'v_cmp_ne_u32 s[58:59], s4, v{t0}'); a(f'v_cmp_ne_u32 vcc, s4, v{t1}')
        a('s_or_b64 s[58:59], s[58:59], vcc'); a(f's_cbranch_scc0 {dn}')
        s.timeout(lp,sleep,dn if dry else None); a(f'{dn}:')
    def gather_p4(s, loads, sleep, dry=True):
        a=s.a; lp=s.lab('gp'); dn=s.lab('gpd'); n=len(loads)
        a(f'{lp}:')
        for (d,vo,so,im) in loads:
            a(f'buffer_load_dwordx4 v[{d}:{d+3}], v{vo}, s[44:47], {so} offen offset:{im} sc1')
        for k,(d,vo,so,im) in enumerate(loads):
            a(f's_waitcnt vmcnt({n-1-k})')
            a(f'v_perm_b32 v244, v{d+1}, v{d}, s62'); a(f'v_perm_b32 v245, v{d+3}, v{d+2}, s63')
            if k==0: a('v_bitop3_b32 v12, v244, v245, v234 bitop3:0x56')
            else:
                a('v_bitop3_b32 v13, v244, v245, v234 bitop3:0x56'); a('v_or_b32 v12, v12, v13')
        a('v_cmp_ne_u32 vcc, 0, v12'); a(f's_cbranch_vccz {dn}')
        s.timeout(lp,sleep,dn if dry else None); a(f'{dn}:')
        for (d,vo,so,im) in loads:
            for r in range(4): a(f'v_and_b32 v{d+r}, s61, v{d+r}')
    def pack4(s, d):
        for r in range(4): s.a(f'v_perm_b32 v{d+r}, v{d+r}, v234, s{64+r}')
    def p4_consts(s):
        a=s.a
        a('s_mov_b32 s61, 0xffffff00'); a('s_mov_b32 s62, 0x0c0c0400'); a('s_mov_b32 s63, 0x04000c0c')
        for r in range(4): a(f's_mov_b32 s{64+r}, 0x0706050{r}')
    def red16_quad(s, d):
        a=s.a
        for ro in (4,8):
            for r in range(4): a(f'v_add_f32_dpp v{d+r}, v{d+r}, v{d+r} row_ror:{ro} row_mask:0xf bank_mask:0xf')
        a(f'v_permlane16_swap_b32 v{d}, v{d+1}'); a(f'v_permlane16_swap_b32 v{d+2}, v{d+3}')
        a(f'v_add_f32 v{d}, v{d}, v{d+1}'); a(f'v_add_f32 v{d+2}, v{d+2}, v{d+3}')
        a(f'v_permlane32_swap_b32 v{d}, v{d+2}'); a(f'v_add_f32 v{d}, v{d}, v{d+2}')
    def rows_to_quad(s, x, t, o):
        a=s.a
        a(f'v_mov_b32 v{t}, v{x}'); a(f'v_permlane16_swap_b32 v{x}, v{t}'); a(f'v_cvt_pk_bf16_f32 v{o}, v{x}, v{t}')
        a(f'v_mov_b32 v{o+1}, v{o}'); a(f'v_permlane32_swap_b32 v{o}, v{o+1}')
    def dma(s, srd, voffs, n, sofn, lds, pace=None, pol=None):
        a=s.a; last=None
        for p in range(n):
            so=sofn(p)
            if pace is not None and p>=pace: a(f's_waitcnt vmcnt({pace-1})')
            a(f's_mov_b32 m0, {lds+p*1024}')
            if so!=last: a(f's_mov_b32 s57, {so}'); last=so
            a(f'buffer_load_dwordx4 v{voffs[p%len(voffs)]}, s[{srd}:{srd+3}], s57 offen {s.ntw if pol is None else pol} lds')
    def unpack(s, p, lo, hi):
        s.a(f'v_lshlrev_b32 v{lo}, 16, v{p}'); s.a(f'v_and_b32 v{hi}, s53, v{p}')
    def ln_sums(s, dw, t, first=True):
        a=s.a; S0,S1,Q0,Q1=t,t+1,t+2,t+3
        for i,d in enumerate(dw):
            S=(S0,S1)[i&1]; Q=(Q0,Q1)[i&1]; z=(first and i<2)
            a(f'v_dot2_f32_bf16 v{S}, v{d}, s26, {"0" if z else "v%d"%S}')
            a(f'v_dot2_f32_bf16 v{Q}, v{d}, v{d}, {"0" if z else "v%d"%Q}')
    def ln_red(s, t):
        a=s.a; S0,S1,Q0,Q1=t,t+1,t+2,t+3
        a(f'v_add_f32 v{S0}, v{S0}, v{S1}'); a(f'v_add_f32 v{Q0}, v{Q0}, v{Q1}')
        for r in (4,8):
            a(f'v_add_f32_dpp v{S0}, v{S0}, v{S0} row_ror:{r} row_mask:0xf bank_mask:0xf')
            a(f'v_add_f32_dpp v{Q0}, v{Q0}, v{Q0} row_ror:{r} row_mask:0xf bank_mask:0xf')
        a(f'v_permlane16_swap_b32 v{S0}, v{Q0}'); a(f'v_add_f32 v{S0}, v{S0}, v{Q0}')
        a(f'v_mov_b32 v{Q0}, v{S0}'); a(f'v_permlane32_swap_b32 v{S0}, v{Q0}'); a(f'v_add_f32 v{S0}, v{S0}, v{Q0}')
    def ln_fin(s, t):
        a=s.a; S0,S1,Q0,Q1=t,t+1,t+2,t+3
        nmu,rs=t+4,t+6
        a(f'v_mul_f32 v{S0}, {fhex(-1/640)}, v{S0}'); a(f'v_mul_f32 v{Q0}, {fhex(1/640)}, v{Q0}')
        a(f'v_fma_f32 v{Q0}, -v{S0}, v{S0}, v{Q0}'); a(f'v_max_f32 v{Q0}, 0, v{Q0}')
        a(f'v_cvt_pk_bf16_f32 v{S1}, v{S0}, v{Q0}'); s.unpack(S1,nmu,Q0)
        a(f'v_add_f32 v{Q0}, {fhex(1e-5)}, v{Q0}'); a(f'v_cvt_pk_bf16_f32 v{Q0}, v{Q0}, v{Q0}'); a(f'v_and_b32 v{Q0}, s53, v{Q0}')
        a(f'v_sqrt_f32 v{Q0}, v{Q0}'); a(f'v_cvt_pk_bf16_f32 v{Q0}, v{Q0}, v{Q0}'); a(f'v_and_b32 v{Q0}, s53, v{Q0}')
        a(f'v_rcp_f32 v{rs}, v{Q0}')
        return nmu,rs
    def ln_stats(s, dw, t):
        s.ln_sums(dw,t); s.ln_red(t)
        s.a(f'v_mov_b32 v{t+2}, v{t}'); s.a(f'v_permlane16_swap_b32 v{t}, v{t+2}')
        return s.ln_fin(t)
    def exec_live(s, lo, hi):
        a=s.a
        a(f's_mov_b32 exec_lo, 0x{lo:x}'); a(f's_mov_b32 exec_hi, 0x{hi:x}'); a('s_and_b64 exec, exec, s[0:1]')
    def got_epoch(s):
        s.a('s_waitcnt lgkmcnt(0)'); s.a('s_add_u32 s4, s4, 1')
    def ln_apply(s, d0, d1, nmu, rs, c1, sh, o0, o1, x):
        a=s.a
        def rnd(last=False):
            a(f'v_cvt_pk_bf16_f32 v{o0}, v{x}, v{x+1}'); a(f'v_cvt_pk_bf16_f32 v{o1}, v{x+2}, v{x+3}')
            if not last: s.unpack(o0,x,x+1); s.unpack(o1,x+2,x+3)
        s.unpack(d0,x,x+1); s.unpack(d1,x+2,x+3)
        for h in (0,2): a(f'v_pk_add_f32 v[{x+h}:{x+h+1}], v[{x+h}:{x+h+1}], v[{nmu}:{nmu+1}] op_sel_hi:[1,0]')
        rnd()
        for h in (0,2): a(f'v_pk_mul_f32 v[{x+h}:{x+h+1}], v[{x+h}:{x+h+1}], v[{rs}:{rs+1}] op_sel_hi:[1,0]')
        rnd()
        for h in (0,2): a(f'v_pk_mul_f32 v[{x+h}:{x+h+1}], v[{x+h}:{x+h+1}], v[{c1+h}:{c1+h+1}]')
        rnd()
        for h in (0,2): a(f'v_pk_add_f32 v[{x+h}:{x+h+1}], v[{x+h}:{x+h+1}], v[{sh+h}:{sh+h+1}]')
        rnd(True)
    def one_plus(s, p0, p1, o):
        a=s.a
        s.unpack(p0,o,o+1); s.unpack(p1,o+2,o+3)
        for i in range(4): a(f'v_add_f32 v{o+i}, 1.0, v{o+i}')
        a(f'v_cvt_pk_bf16_f32 v{p0}, v{o}, v{o+1}'); a(f'v_cvt_pk_bf16_f32 v{p1}, v{o+2}, v{o+3}')
        s.unpack(p0,o,o+1); s.unpack(p1,o+2,o+3)
    def red8_pair(s, a0, a1, t):
        a=s.a
        a(f'v_add_f32_dpp v{a0}, v{a0}, v{a0} row_ror:8 row_mask:0xf bank_mask:0xf')
        a(f'v_add_f32_dpp v{a1}, v{a1}, v{a1} row_ror:8 row_mask:0xf bank_mask:0xf')
        a(f'v_permlane16_swap_b32 v{a0}, v{a1}'); a(f'v_add_f32 v{a0}, v{a0}, v{a1}')
        a(f'v_mov_b32 v{t}, v{a0}'); a(f'v_permlane32_swap_b32 v{a0}, v{t}'); a(f'v_add_f32 v{a0}, v{a0}, v{t}')
    def rnd1(s, r):
        s.a(f'v_cvt_pk_bf16_f32 v{r}, v{r}, v{r}'); s.a(f'v_and_b32 v{r}, s53, v{r}')

    def stream(s):
        a=s.a; D=s.D
        KB=64; VB=160; Q=16; ACC=28; SC=40; MK=48; AT=(52,56); vM=60; vL=61; vO=62
        a('L_stream:')
        a('s_lshr_b32 s7, s6, 1'); a('s_lshl_b32 s7, s7, 5'); a('s_add_u32 s7, s7, s5'); a('s_mul_i32 s7, s7, 1572864')
        a('s_and_b32 s56, s6, 1'); a('s_lshl_b32 s56, s56, 2'); a('s_add_u32 s56, s56, s3'); a('s_mul_i32 s56, s56, 196608'); a('s_add_u32 s7, s7, s56')
        s.srd(8,18,7,196608); s.srd(12,20,7,196608)
        a(f'v_lshrrev_b32 v2, 3, v1'); a(f'v_mul_u32_u24 v{vO}, 384, v2'); a('v_and_b32 v3, 7, v1'); a(f'v_lshl_add_u32 v{vO}, v3, 4, v{vO}')
        a('s_mov_b32 s56, 0'); a('s_mov_b32 s57, 0')
        if s.bar2: a('s_barrier')
        def issue(kv, gi, pace=True):
            base=(KB,VB)[kv]+12*gi; srd=('s[8:11]','s[12:15]')[kv]; so=('s56','s57')[kv]
            for jj in range(3):
                if pace is True or (pace is not False and pace+jj>=D): a(f's_waitcnt vmcnt({D-1})')
                a(f'buffer_load_dwordx4 v[{base+4*jj}:{base+4*jj+3}], v{vO}, {srd}, {so} offen offset:{(gi&1)*3072+jj*128} {s.pol[kv]}')
            if gi&1: a(f's_add_u32 {so}, {so}, 6144')
        n=0
        for kv in (0,1):
            for gi in range(8):
                issue(kv,gi,pace=n); n+=3
                if n-3<D<=n:
                    s.got_epoch()
                    a('v_and_b32 v4, 1, v1'); a('v_cmp_eq_u32 vcc, 1, v4'); a('v_mov_b32 v5, 0xffff'); a('v_mov_b32 v6, s53')
                    a('v_cndmask_b32 v5, v5, v6, vcc'); a('v_lshrrev_b32 v4, 1, v3')
                    for w in range(4):
                        a(f'v_cmp_eq_u32 vcc, {w}, v4'); a(f'v_cndmask_b32 v{MK+w}, 0, v5, vcc')
                    for i in range(12): a(f'v_mov_b32 v{ACC+i}, 0')
                    a(f'v_mov_b32 v{vM}, {fhex(-1e30)}'); a(f'v_mov_b32 v{vL}, 0')
        s.ts(1)
        s.lds_inc(F_RING)
        if not s.so: s.lds_wait(F_Q,'lg',0,1)
        a(f'v_lshlrev_b32 v4, 4, v3'); a(f'v_add_u32 v4, {L_Q}, v4')
        for jj in range(3): a(f'ds_read_b128 v[{Q+4*jj}:{Q+4*jj+3}], v4 offset:{128*jj}')
        a('s_mov_b32 s58, 0'); a('s_mov_b64 vcc, 0')
        a('s_waitcnt lgkmcnt(0)')
        s.ts(2)
        a('L_sloop:')
        for g2 in range(0,8,2):
            for i in range(12):
                for gi in (g2,g2+1):
                    a(f'v_dot2_f32_bf16 v{SC+gi}, v{KB+12*gi+i}, v{Q+i}, {"0" if i==0 else "v%d"%(SC+gi)}')
            sk=s.lab('sk'); a(f's_cbranch_vccnz {sk}'); issue(0,g2); issue(0,g2+1); a(f'{sk}:')
        a('s_nop 2')
        for m in ('quad_perm:[1,0,3,2]','quad_perm:[2,3,0,1]','row_half_mirror'):
            for gi in range(8): a(f'v_add_f32_dpp v{SC+gi}, v{SC+gi}, v{SC+gi} {m} row_mask:0xf bank_mask:0xf')
        for g2 in range(0,8,2): a(f'v_cvt_pk_bf16_f32 v{4+g2//2}, v{SC+g2}, v{SC+g2+1}')
        for g2 in range(0,8,2): s.unpack(4+g2//2,SC+g2,SC+g2+1)
        for gi in range(8): a(f'v_mul_f32 v{SC+gi}, s54, v{SC+gi}')
        for g2 in range(0,8,2): a(f'v_cvt_pk_bf16_f32 v{4+g2//2}, v{SC+g2}, v{SC+g2+1}')
        for g2 in range(0,8,2): s.unpack(4+g2//2,SC+g2,SC+g2+1)
        a(f'v_max3_f32 v4, v{SC}, v{SC+1}, v{SC+2}'); a(f'v_max3_f32 v5, v{SC+3}, v{SC+4}, v{SC+5}')
        a(f'v_max3_f32 v4, v4, v{SC+6}, v{SC+7}'); a('v_max_f32 v4, v4, v5')
        a('v_max_f32_dpp v4, v4, v4 row_ror:8 row_mask:0xf bank_mask:0xf')
        a('v_mov_b32 v5, v4'); a('v_permlane16_swap_b32 v4, v5'); a('v_max_f32 v4, v4, v5')
        a('v_mov_b32 v5, v4'); a('v_permlane32_swap_b32 v4, v5'); a('v_max_f32 v4, v4, v5')
        a('v_mul_f32 v4, s55, v4'); a(f'v_max_f32 v4, v4, v{vM}')
        a(f'v_sub_f32 v5, v{vM}, v4'); a('v_exp_f32 v5, v5'); a(f'v_mov_b32 v{vM}, v4')
        for gi in range(8): a(f'v_fma_f32 v{SC+gi}, v{SC+gi}, s55, -v{vM}')
        for gi in range(8): a(f'v_exp_f32 v{SC+gi}, v{SC+gi}')
        for i in range(12): a(f'v_mul_f32 v{ACC+i}, v5, v{ACC+i}')
        a(f'v_mul_f32 v{vL}, v5, v{vL}')
        def mkA(gi):
            at=AT[gi&1]
            a(f'v_cvt_pk_bf16_f32 v6, v{SC+gi}, v{SC+gi}')
            for w in range(4): a(f'v_and_b32 v{at+w}, v6, v{MK+w}')
            a(f'v_add_f32 v{vL}, v{vL}, v{SC+gi}')
        mkA(0)
        for gi in range(8):
            if gi<7: mkA(gi+1)
            if 3*(7-gi)<D+2:
                sk=s.lab('nw'); a(f's_cbranch_vccz {sk}'); a(f's_waitcnt vmcnt({3*(7-gi)})'); a(f'{sk}:')
            at=AT[gi&1]
            for jj in range(3):
                b=VB+12*gi+4*jj
                a(f'v_mfma_f32_16x16x32_bf16 v[{ACC+4*jj}:{ACC+4*jj+3}], v[{at}:{at+3}], v[{b}:{b+3}], v[{ACC+4*jj}:{ACC+4*jj+3}]')
            sk=s.lab('sv'); a(f's_cbranch_vccnz {sk}'); issue(1,gi); a(f'{sk}:')
        if s.TS:
            for it,idx in ((0,5),(1,6),(2,7),(4,8),(6,9)):
                sk=s.lab('ts'); a(f's_cmp_lg_u32 s58, {it}'); a(f's_cbranch_scc1 {sk}'); s.ts(idx); a(f'{sk}:')
        a('s_add_u32 s58, s58, 1'); a('v_mov_b32 v4, s58'); a(f'ds_write_b32 v14, v4 offset:{F_PROG}'); a('s_cmp_eq_u32 s58, 7'); a('s_cselect_b64 vcc, -1, 0'); a('s_cmp_lt_u32 s58, 8'); a('s_cbranch_scc1 L_sloop')
        s.ts(4)
        a('L_merge:')
        a(f'v_add_f32_dpp v{vL}, v{vL}, v{vL} row_ror:8 row_mask:0xf bank_mask:0xf')
        a('v_lshrrev_b32 v4, 5, v1'); a('s_lshl_b32 s7, s3, 1')
        a(f'v_mov_b32 v5, v{vL}'); a('v_add_u32 v8, s7, v4'); a('v_mul_u32_u24 v8, 768, v8')
        a(f'v_permlane16_swap_b32 v{vL}, v5'); a(f'v_add_f32 v{vL}, v{vL}, v5')
        a('v_lshl_add_u32 v8, v3, 5, v8'); a(f'v_mov_b32 v5, v{vL}'); a('v_and_b32 v9, 16, v1'); a('v_add3_u32 v8, v8, v9, v11')
        a(f'v_permlane32_swap_b32 v{vL}, v5'); a(f'v_add_f32 v13, v{vL}, v5')
        a(f'v_mov_b32 v12, v{vM}')
        a('s_lshl_b32 s7, s3, 3'); a(f's_add_u32 s7, s7, {L_ML}'); a('v_mov_b32 v5, s7'); a('v_mov_b32 v6, 1')
        s.exec_live(0x00ff00ff,0xff00ff00)
        for jj in range(3): a(f'ds_write_b128 v8, v[{ACC+4*jj}:{ACC+4*jj+3}] offset:{256*jj}')
        a('s_and_b64 exec, s[0:1], 1')
        a('ds_write_b64 v5, v[12:13]')
        a('s_waitcnt lgkmcnt(0)')
        a(f'ds_add_rtn_u32 v7, v14, v6 offset:{F_CNT}')
        a('s_mov_b64 exec, -1')
        a('v_mul_u32_u24 v4, 768, v4'); a('v_and_b32 v5, 31, v1'); a('v_mul_u32_u24 v8, 24, v5'); a('v_add3_u32 v4, v4, v8, v11')
        a(f'v_mov_b32 v9, {L_ML}')
        a('v_lshlrev_b32 v10, 4, v1')
        a('s_lshl_b32 s56, s2, 10'); a(f's_add_u32 s56, s56, {WS_OP}')
        a('s_waitcnt lgkmcnt(0)')
        a('v_readfirstlane_b32 s7, v7'); a('s_cmp_lg_u32 s7, 3'); a('s_cbranch_scc1 L_notlast')
        a('L_merge2:')
        a('ds_read_b128 v[64:67], v9'); a('ds_read_b128 v[68:71], v9 offset:16')
        for w in range(4):
            for e in range(3): a(f'ds_read_b64 v[{72+6*w+2*e}:{73+6*w+2*e}], v4 offset:{1536*w+8*e}')
        a('s_waitcnt lgkmcnt(12)')
        a('v_max3_f32 v60, v64, v66, v68'); a('v_max_f32 v60, v60, v70')
        for w in range(4): a(f'v_sub_f32 v{64+2*w}, v{64+2*w}, v60')
        for w in range(4): a(f'v_exp_f32 v{64+2*w}, v{64+2*w}')
        a('v_mul_f32 v61, v64, v65')
        for w in range(1,4): a(f'v_fmac_f32 v61, v{64+2*w}, v{65+2*w}')
        a('v_rcp_f32 v62, v61')
        a('s_waitcnt lgkmcnt(0)')
        for e in range(6): a(f'v_mul_f32 v{72+e}, v64, v{72+e}')
        for w in range(1,4):
            for e in range(6): a(f'v_fmac_f32 v{72+e}, v{64+2*w}, v{72+6*w+e}')
        for e in (0,2,4): a(f'v_permlane32_swap_b32 v{72+e}, v{73+e}')
        for e in (0,2,4): a(f'v_add_f32 v{72+e}, v{72+e}, v{73+e}')
        for e in (0,2,4): a(f'v_mul_f32 v{72+e}, v62, v{72+e}')
        for e in (0,2,4): a(f'v_mov_b32 v{73+e}, v{72+e}')
        for e in (0,2,4): a(f'v_permlane32_swap_b32 v{72+e}, v{73+e}')
        for i,e in enumerate((0,2,4)): a(f'v_cvt_pk_bf16_f32 v{80+i}, v{72+e}, v{73+e}')
        a('v_mov_b32 v83, s4')
        a('s_mov_b32 exec_lo, 0'); a('s_mov_b32 exec_hi, 1')
        a('v_mov_b32 v80, v60'); a('v_mov_b32 v81, v61')
        s.exec_live(0xffffffff,1)
        a('buffer_store_dwordx4 v[80:83], v10, s[44:47], s56 offen sc1')
        a('s_mov_b64 exec, -1')
        a('s_cmp_eq_u32 s27, 0'); a('s_cbranch_scc1 L_w7_cont')
        a('L_send:')
        s.end()
        a('L_notlast:')
        a('s_cmp_eq_u32 s27, 0'); a('s_cbranch_scc1 L_merge2')
        a('s_branch L_send')

    def strip_voff(s, r, pitch):
        a=s.a
        a(f'v_lshrrev_b32 v{r}, 1, v1'); a(f's_mov_b32 s7, {pitch}'); a(f'v_mul_lo_u32 v{r}, v{r}, s7'); a(f'v_and_b32 v15, 1, v1'); a(f'v_lshl_add_u32 v{r}, v15, 4, v{r}')

    def wave4(s):
        a=s.a
        a('L_w4:')
        a('s_setprio 2')
        s.srd(12,16,None,5120)
        a('v_and_b32 v15, 3, v1'); a('v_mul_u32_u24 v9, 1280, v15'); a('v_lshrrev_b32 v10, 2, v1'); a('v_lshl_add_u32 v10, v10, 4, v9')
        for m in range(5): a(f'buffer_load_dwordx4 v[{16+4*m}:{19+4*m}], v10, s[12:15], 0 offen offset:{256*m}')
        a('v_and_b32 v11, 12, v2'); a('v_add_u32 v11, v11, v3'); a('v_lshl_add_u32 v9, v11, 3, v9'); a('s_mul_i32 s7, s6, 160')
        for m in range(2): a(f'buffer_load_dwordx2 v[{228+2*m}:{229+2*m}], v9, s[12:15], s7 offen offset:{128*m}')
        a('s_mul_i32 s7, s6, 983040'); a('s_mul_i32 s56, s5, 384'); a('s_add_u32 s7, s7, s56')
        s.srd(8,22,7,79*12288+384)
        for ph in range(3):
            a(f'v_add_u32 v4, {64*ph}, v1'); a('v_mul_u32_u24 v5, 2731, v4'); a('v_lshrrev_b32 v5, 16, v5')
            a('v_mul_u32_u24 v6, 24, v5'); a('v_sub_u32 v4, v4, v6'); a('v_mul_u32_u24 v5, 12288, v5'); a(f'v_lshl_add_u32 v{232+ph}, v4, 4, v5')
        s.dma(8,[232,233,234],30,lambda p:(p//3)*98304,L_WQ)
        if s.bar2: a('s_barrier')
        s.got_epoch()
        a('v_lshlrev_b32 v8, 6, v11'); a('v_lshl_add_u32 v8, v15, 4, v8')
        a('v_lshrrev_b32 v7, 2, v1'); a('v_mul_u32_u24 v7, 384, v7'); a('v_lshl_add_u32 v7, v15, 3, v7')
        if L_WQ: a(f'v_add_u32 v7, {L_WQ}, v7')
        for nt in range(12): a(f'v_mov_b32 v{160+6*nt}, s4')
        a('s_waitcnt vmcnt(30)')
        nmu,rs=s.ln_stats([16+i for i in range(20)],240)
        a('s_waitcnt vmcnt(0)')
        s.ts(1)
        for kb in range(5):
            for nt in range(12): a(f'ds_read_b64_tr_b16 v[{16+2*(12*kb+nt)}:{17+2*(12*kb+nt)}], v7 offset:{6144*kb+32*nt}')
        a('s_mul_i32 s56, s6, 1280'); a(f's_add_u32 s56, s56, {WS_MOD}'); a('s_add_u32 s57, s56, 10240')
        full=(1<<64)-1; q4=0x000f000f000f000f
        s.gather_masked([(136,3,8,'s56',0),(140,3,8,'s57',0),(144,3,8,'s56',1024),(148,3,8,'s57',1024)],2,[full,full,q4,q4],1)
        s.ts(2)
        for m in range(2):
            sa,ca=136+8*m,140+8*m
            s.unpack(sa,232,233); s.unpack(sa+1,234,235)
            s.one_plus(ca,ca+1,236)
            s.ln_apply(228+2*m,229+2*m,nmu,rs,236,232,152+2*m,153+2*m,248)
        Bf={0:152,4:154}
        for sb in range(1,4):
            Bf[sb]=136+2*sb
            for e in range(2): a(f'v_mov_b32_dpp v{136+2*sb+e}, v{152+e} row_shl:{4*sb} row_mask:0xf bank_mask:0xf')
        a('s_waitcnt lgkmcnt(0)')
        for kb in (0,4,1,2,3):
            for nt in range(12):
                ac=156+6*nt; f=16+2*(12*kb+nt)
                a(f'v_mfma_f32_16x16x16_bf16 v[{ac}:{ac+3}], v[{f}:{f+1}], v[{Bf[kb]}:{Bf[kb]+1}], {"0" if kb==0 else "v[%d:%d]"%(ac,ac+3)}')
        a('v_mul_u32_u24 v9, 12288, v2'); a('v_lshl_add_u32 v9, v3, 4, v9')
        a('s_mul_i32 s56, s5, 49152'); a('s_mul_i32 s7, s6, 1536'); a('s_add_u32 s56, s56, s7'); a(f's_add_u32 s56, s56, {WS_QP}')
        a('s_mov_b32 exec_lo, 0x000f000f'); a('s_mov_b32 exec_hi, 0x000f000f')
        for nt in range(12):
            ac=156+6*nt
            a(f'buffer_store_dwordx3 v[{ac+2}:{ac+4}], v9, s[44:47], s56 offen offset:{768+64*nt} sc1')
        for nt in range(12): a(f'v_mov_b32 v{156+6*nt+2}, s4')
        for nt in range(12):
            ac=156+6*nt
            a(f'buffer_store_dwordx3 v[{ac}:{ac+2}], v9, s[44:47], s56 offen offset:{64*nt} sc1')
        s.ts(3)
        a('s_lshr_b32 s7, s6, 1'); a('s_lshl_b32 s56, s5, 2'); a('s_add_u32 s7, s7, s56'); a('s_mul_i32 s56, s7, 12288'); a(f's_add_u32 s56, s56, {WS_QP}')
        a('s_mov_b64 exec, -1')
        a('v_lshlrev_b32 v8, 4, v1')
        for i in range(1,4): a(f'v_add_u32 v{8+i}, {3072*i}, v8')
        a('s_mov_b32 exec_hi, 0xffff')
        loads=[(16+4*(2*p+rp),3,8+p//2,'s56',(p&1)*1536+rp*768) for p in range(8) for rp in range(2)]
        s.gather_full(loads,2,1)
        for p in range(1,8):
            for rp in range(2):
                for e in range(2): a(f'v_add_f32 v{16+4*rp+e}, v{16+4*rp+e}, v{16+4*(2*p+rp)+e}')
        a('v_cvt_pk_bf16_f32 v24, v16, v17'); a('v_cvt_pk_bf16_f32 v25, v20, v21')
        a('v_lshlrev_b32 v8, 3, v1'); a(f'v_add_u32 v8, {L_Q}, v8')
        a('ds_write_b64 v8, v[24:25]'); a('s_waitcnt lgkmcnt(0)')
        s.lds_inc(F_Q)
        s.ts(4)
        a('s_branch L_prep')

    def wave56(s):
        a=s.a
        a('L_w56:')
        a('s_sub_u32 s58, s3, 5')
        a('s_cmp_ge_u32 s6, 5'); a('s_cbranch_scc1 L_w56g')
        a('s_cmp_ge_u32 s78, 60'); a('s_cbranch_scc1 L_w56n')
        a('s_setprio 3')
        a('s_mov_b64 vcc, 0')
        a('s_cmp_lt_u32 s78, 20'); a('s_cbranch_scc1 L_w56c')
        if s.bar2: a('s_barrier')
        a('s_setprio 0')
        if s.gate: s.lds_wait(F_RING,'ge',s.gate,4)
        a('s_mov_b64 vcc, -1')
        a('L_w56c:')
        s.srd(48,34,None,5120)
        a('v_and_b32 v15, 3, v1'); a('v_mul_u32_u24 v9, 1280, v15'); a('v_lshrrev_b32 v10, 2, v1'); a('v_lshl_add_u32 v9, v10, 4, v9')
        a('s_mul_i32 s7, s58, 640')
        for i in range(3): a(f'buffer_load_dwordx4 v[{16+4*i}:{19+4*i}], v9, s[48:51], s7 offen offset:{256*i}')
        a('s_lshl_b32 s7, s78, 7')
        s.srd(8,36,7,639*7680+128)
        a('v_lshrrev_b32 v8, 3, v1'); a('v_mul_u32_u24 v8, 7680, v8'); a('v_and_b32 v11, 7, v1'); a('v_lshl_add_u32 v8, v11, 4, v8')
        a(f's_mul_i32 s57, s58, {320*7680}'); a('s_mul_i32 s56, s58, 40960'); a(f's_add_u32 s56, s56, {L_X}'); a('s_mov_b32 m0, s56')
        for p in range(40):
            if p>=s.DM:
                sk=s.lab('np'); a(f's_cbranch_vccz {sk}'); a(f's_waitcnt vmcnt({s.DM-1})'); a(f'{sk}:')
            a(f'buffer_load_dwordx4 v8, s[8:11], s57 offen {s.ntw} lds')
            if p<39: a('s_add_u32 m0, m0, 1024'); a('s_add_u32 s57, s57, 61440')
        if s.bar2:
            sk=s.lab('nb'); a(f's_cbranch_vccnz {sk}'); a('s_barrier'); a(f'{sk}:')
        s.got_epoch()
        a('s_mul_i32 s7, s58, 2560'); a(f's_add_u32 s7, s7, {L_SC}')
        a('v_mul_u32_u24 v9, 640, v15'); a('v_add_u32 v9, s7, v9'); a('v_lshl_add_u32 v5, v10, 4, v9'); a('v_lshl_add_u32 v6, v3, 4, v9')
        a('v_lshrrev_b32 v7, 2, v2'); a('v_lshl_add_u32 v7, v3, 3, v7'); a('v_lshlrev_b32 v7, 7, v7'); a('v_lshl_add_u32 v7, v15, 3, v7'); a('v_add_u32 v7, s56, v7')
        a('s_waitcnt vmcnt(40)')
        s.ts(1)
        T=216
        for m in range(3):
            for i in range(4): s.unpack(16+4*m+i,T+2*i,T+2*i+1)
            for i in range(8): a(f'v_mul_f32 v{T+8+i}, {fhex(-LOG2E)}, v{T+i}')
            for i in range(8): a(f'v_exp_f32 v{T+8+i}, v{T+8+i}')
            for i in range(8): a(f'v_add_f32 v{T+8+i}, 1.0, v{T+8+i}')
            for i in range(8): a(f'v_rcp_f32 v{T+8+i}, v{T+8+i}')
            for i in range(8): a(f'v_mul_f32 v{T+i}, v{T+i}, v{T+8+i}')
            for i in range(4): a(f'v_cvt_pk_bf16_f32 v{16+4*m+i}, v{T+2*i}, v{T+2*i+1}')
            if m==2: a('s_mov_b32 exec_hi, 0')
            a(f'ds_write_b128 v5, v[{16+4*m}:{19+4*m}] offset:{256*m}')
        a('s_mov_b64 exec, -1')
        a('s_waitcnt lgkmcnt(0)')
        for kb in range(10): a(f'ds_read_b128 v[{32+4*kb}:{35+4*kb}], v6 offset:{64*kb}')
        s.ts(2)
        for c in range(5):
            a(f's_waitcnt vmcnt({32-8*c})')
            F=72+32*(c&1)
            for k2 in range(2):
                for nt in range(4):
                    f=F+16*k2+4*nt; off=4096*(2*c+k2)+32*nt
                    a(f'ds_read_b64_tr_b16 v[{f}:{f+1}], v7 offset:{off}'); a(f'ds_read_b64_tr_b16 v[{f+2}:{f+3}], v7 offset:{off+512}')
            for k2 in range(2):
                a(f's_waitcnt lgkmcnt({8-8*k2})')
                kb=2*c+k2
                for nt in range(4):
                    f=F+16*k2+4*nt; ac=136+4*nt
                    a(f'v_mfma_f32_16x16x32_bf16 v[{ac}:{ac+3}], v[{f}:{f+3}], v[{32+4*kb}:{35+4*kb}], {"0" if kb==0 else "v[%d:%d]"%(ac,ac+3)}')
        s.ts(3)
        a('v_lshlrev_b32 v8, 4, v1'); a('s_lshl_b32 s7, s58, 10'); a(f's_add_u32 s7, s7, {L_MR}'); a('v_add_u32 v9, s7, v8')
        a('s_xor_b32 s7, s58, 1'); a('s_lshl_b32 s7, s7, 10'); a(f's_add_u32 s7, s7, {L_MR}'); a('v_add_u32 v10, s7, v8')
        a('v_mov_b32 v11, 1')
        for sb in range(1,4):
            m=0xf<<(4*sb); m|=m<<16
            a(f's_mov_b32 exec_lo, 0x{m:x}'); a(f's_mov_b32 exec_hi, 0x{m:x}')
            for r in range(4): a(f'v_mov_b32 v{136+r}, v{136+4*sb+r}')
        a('s_mov_b64 exec, -1')
        a('ds_write_b128 v9, v[136:139]'); a('s_waitcnt lgkmcnt(0)')
        a('s_mov_b64 exec, 1'); a(f'ds_add_rtn_u32 v11, v14, v11 offset:{F_MOD}'); a('s_mov_b64 exec, -1')
        a('v_and_b32 v8, 12, v2'); a('v_add_u32 v8, v8, v3'); a('v_lshlrev_b32 v8, 6, v8'); a('v_lshl_add_u32 v8, v15, 4, v8')
        a('s_lshl_b32 s56, s78, 10'); a(f's_add_u32 s56, s56, {WS_MOD}'); a('v_mov_b32 v146, s4')
        a('s_waitcnt lgkmcnt(0)')
        a('v_readfirstlane_b32 s7, v11'); a('s_cmp_eq_u32 s7, 0'); a('s_cbranch_scc1 L_prep')
        a('ds_read_b128 v[140:143], v10'); a('s_waitcnt lgkmcnt(0)')
        for r in range(4): a(f'v_add_f32 v{136+r}, v{136+r}, v{140+r}')
        a('v_cvt_pk_bf16_f32 v144, v136, v137'); a('v_cvt_pk_bf16_f32 v145, v138, v139')
        a('buffer_store_dwordx4 v[144:147], v8, s[44:47], s56 offen sc1')
        s.ts(4)
        a('s_branch L_prep')
        a('L_w56n:')
        if s.bar2: a('s_barrier')
        s.got_epoch()
        a('s_branch L_prep')
        a('L_w56g:')
        a('s_cmp_eq_u32 s58, 0'); a('s_cselect_b32 s8, s28, s30'); a('s_cselect_b32 s9, s29, s31')
        a('s_lshl_b32 s7, s78, 5'); a('s_add_u32 s8, s8, s7'); a('s_addc_u32 s9, s9, 0'); a(f's_mov_b32 s10, {639*3072+32}'); a('s_mov_b32 s11, 0x20000')
        s.strip_voff(8,3072)
        if s.bar2: a('s_barrier')
        s.got_epoch()
        if s.gate: s.lds_wait(F_RING,'ge',s.gate,4)
        a('s_mul_i32 s56, s58, 20480'); a(f's_add_u32 s56, s56, {L_U0}'); a('s_mov_b32 m0, s56'); a('s_mov_b32 s57, 0')
        for p in range(20):
            if p>=s.DG: a(f's_waitcnt vmcnt({s.DG-1})')
            a(f'buffer_load_dwordx4 v8, s[8:11], s57 offen {s.gpol} lds')
            if p<19: a('s_add_u32 m0, m0, 1024'); a(f's_add_u32 s57, s57, {32*3072}')
        a('s_waitcnt vmcnt(0)')
        s.lds_inc(F_G)
        a('s_branch L_prep')

    def wave7(s):
        a=s.a
        a('L_w7:')
        if s.bar2: a('s_barrier')
        s.got_epoch()
        if s.dry:
            a('s_mov_b32 s27, 0'); a('s_mov_b64 s[0:1], 0'); a('s_branch L_merge')
        a('L_w7_cont:')
        if s.gate: s.lds_wait(F_RING,'ge',s.gate,4)
        a('s_cmp_ge_u32 s6, 5'); a('s_cbranch_scc1 L_w7g')
        a('s_cmp_ge_u32 s78, 60'); a('s_cbranch_scc1 L_w7w')
        s.lds_wait(F_MOD,'ge',2,4)
        a('L_w7w:')
        a('s_mul_i32 s7, s5, 245760'); a('s_lshl_b32 s56, s6, 8'); a('s_add_u32 s7, s7, s56')
        s.srd(8,24,7,191*1280+256)
        a('v_mul_u32_u24 v8, 1280, v3'); a('v_lshl_add_u32 v8, v2, 4, v8')
        s.dma(8,[8],48,lambda p:p*4*1280,L_X,pace=s.DAUX)
        a('s_waitcnt vmcnt(0)')
        s.lds_inc(F_WO)
        s.lds_wait(F_PROG,'ge',s.prog,16)
        s.srd(12,16,None,5120)
        a('v_and_b32 v15, 3, v1'); a('v_lshlrev_b32 v8, 4, v15')
        a('v_mul_u32_u24 v9, 1280, v15'); a('v_lshl_add_u32 v9, v3, 1, v9')
        a('s_lshl_b32 s7, s78, 3')
        a('buffer_load_ushort v154, v9, s[12:15], s7 offen')
        a('s_lshl_b32 s56, s78, 6'); a(f's_add_u32 s57, s56, {WS_MOD+M_GB}'); a(f's_add_u32 s56, s56, {WS_MOD+M_GA}')
        s.gather_masked([(176,3,8,'s56',0),(180,3,8,'s57',0)],2,(1<<64)-1,16)
        a('v_cmp_lt_u32 vcc, 31, v1')
        a('v_cndmask_b32 v176, v176, v177, vcc'); a('v_cndmask_b32 v180, v180, v181, vcc')
        a('v_lshlrev_b32 v154, 16, v154')
        s.unpack(176,152,177); s.unpack(180,153,181)
        a('v_and_b32 v11, 1, v3'); a('v_cmp_ne_u32 vcc, 0, v11')
        a('v_cndmask_b32 v152, v152, v177, vcc'); a('v_cndmask_b32 v153, v153, v181, vcc')
        a('s_branch L_prep')
        a('L_w7g:')
        a('s_mul_i32 s7, s78, 20480')
        s.srd(8,32,7,20480)
        a('v_lshlrev_b32 v8, 4, v1')
        s.dma(8,[8],20,lambda p:p*1024,L_U2,pace=s.DD)
        a('s_waitcnt vmcnt(0)')
        s.lds_inc(F_G)

    def redo(s, lab):
        a=s.a; e=s.lab('e')
        a('s_mov_b64 exec, -1')
        a('s_cmp_lg_u32 s27, 0'); a(f's_cbranch_scc1 {e}')
        a('s_mov_b32 s27, 1'); a('s_mov_b64 s[0:1], -1'); a(f's_branch {lab}')
        a(f'{e}:')
        a('s_add_u32 s3, s3, 4')
        s.end()
    def bar(s):
        a=s.a; e=s.lab('b')
        a('s_cmp_eq_u32 s27, 0'); a('s_waitcnt lgkmcnt(0)'); a(f's_cbranch_scc1 {e}'); a('s_barrier'); a(f'{e}:')
    def prep_and_tail(s):
        a=s.a
        a('L_prep:')
        a('s_setprio 0')
        a('s_sub_u32 s3, s3, 4')
        if s.dry: a('s_mov_b32 s27, 0'); a('s_mov_b64 s[0:1], 0')
        else: a('s_mov_b32 s27, 1'); a('s_mov_b64 s[0:1], -1')
        a('v_and_b32 v2, 15, v1'); a('v_lshrrev_b32 v3, 4, v1'); a('v_and_b32 v15, 3, v1')
        s.lds_wait(F_PROG,'ge',s.prog,16,vt=13)
        a('v_mov_b32 v234, s4')
        a('s_cmp_ge_u32 s6, 5'); a('s_cbranch_scc1 L_gprep')
        s.lds_wait(F_WO,'lg',0,8,vt=13)
        a('v_lshrrev_b32 v7, 2, v2'); a('v_mul_u32_u24 v8, 6, v3'); a('v_add_u32 v7, v7, v8'); a('v_lshlrev_b32 v7, 8, v7')
        a('v_lshl_add_u32 v7, v15, 3, v7')
        a('s_lshl_b32 s7, s3, 6'); a(f's_add_u32 s7, s7, {L_X}'); a('v_add_u32 v7, s7, v7')
        for t in range(2):
            for kb in range(8):
                f=16+32*t+4*kb
                a(f'ds_read_b64_tr_b16 v[{f}:{f+1}], v7 offset:{6144*kb+32*t}')
                a(f'ds_read_b64_tr_b16 v[{f+2}:{f+3}], v7 offset:{6144*kb+32*t+1024}')
        a('v_lshlrev_b32 v4, 10, v2'); a('v_lshl_add_u32 v5, v3, 4, v4')
        a('v_lshrrev_b32 v6, 1, v2'); a('v_lshlrev_b32 v6, 4, v6'); a('v_lshl_add_u32 v6, v3, 11, v6')
        a('v_lshlrev_b32 v8, 4, v1'); a('v_add_u32 v9, 4096, v8')
        a('v_mul_u32_u24 v11, 1280, v1')
        s.srd(12,38,None,5120)
        a('s_waitcnt lgkmcnt(0)')
        for t in range(2):
            for kb in range(8): a(f'v_mov_b32 v{16+32*t+4*kb+3}, 0')
        a('L_tail:')
        a('s_lshl_b32 s56, s5, 13'); a(f's_add_u32 s56, s56, {WS_OP}')
        a('s_lshl_b32 s57, s6, 2'); a('s_add_u32 s57, s57, s3'); a('s_lshl_b32 s57, s57, 14'); a('s_lshl_b32 s7, s5, 6'); a('s_add_u32 s57, s57, s7'); a(f's_add_u32 s57, s57, {WS_WR}')
        a('s_add_u32 s50, s57, 8192')
        s.ts(5)
        s.lds_wait(F_CNT,'ge',4,4,vt=13,dry=True)
        s.ts(6)
        s.gather_masked([(208,4,4,'s56',512)]+[(176+4*kb,4,5,'s56',64*kb) for kb in range(8)],3,0x00ff00ff00ff00ff,1,dry=True)
        s.ts(7)
        for kb in range(8): a(f'v_mov_b32 v{179+4*kb}, 0')
        s.p4_consts()
        for kb in range(8):
            for t in range(2):
                a(f'v_mfma_f32_16x16x32_bf16 v[{224+4*t}:{227+4*t}], v[{16+32*t+4*kb}:{19+32*t+4*kb}], v[{176+4*kb}:{179+4*kb}], {"0" if kb==0 else "v[%d:%d]"%(224+4*t,227+4*t)}')
            if kb==0:
                a('v_max_f32_dpp v212, v208, v208 quad_perm:[1,0,3,2] row_mask:0xf bank_mask:0xf')
                a('v_sub_f32 v212, v208, v212'); a('v_exp_f32 v212, v212')
            if kb==1: a('v_mul_f32 v212, v212, v209')
            if kb==2:
                a('v_add_f32_dpp v213, v212, v212 quad_perm:[1,0,3,2] row_mask:0xf bank_mask:0xf'); a('v_rcp_f32 v213, v213')
            if kb==3: a('v_mul_f32 v212, v212, v213')
        for r in range(8): a(f'v_mul_f32 v{224+r}, v212, v{224+r}')
        for r in range(8): a(f'v_add_f32_dpp v{224+r}, v{224+r}, v{224+r} quad_perm:[1,0,3,2] row_mask:0xf bank_mask:0xf')
        s.pack4(224); s.pack4(228)
        s.exec_live(0x00550055,0x00550055)
        a('buffer_store_dwordx4 v[224:227], v6, s[44:47], s57 offen sc1')
        a('buffer_store_dwordx4 v[228:231], v6, s[44:47], s50 offen sc1')
        a('s_mov_b64 exec, -1')
        s.ts(8)
        a('s_cmp_lg_u32 s3, 3'); a('s_cbranch_scc1 L_auxend')
        a('s_lshl_b32 s56, s78, 11'); a(f's_add_u32 s56, s56, {WS_WR}')
        a('s_lshl_b32 s57, s78, 6'); a(f's_add_u32 s57, s57, {WS_X1}')
        s.gather_p4([(176+4*k,8,'s56',1024*k) for k in range(2)],1)
        s.ts(9)
        for h in (0,2): a(f'v_pk_add_f32 v[{176+h}:{177+h}], v[{176+h}:{177+h}], v[{180+h}:{181+h}]')
        s.red16_quad(176)
        s.rnd1(176); a('v_mul_f32 v176, v152, v176'); s.rnd1(176); a('v_add_f32 v176, v154, v176'); a('v_mov_b32 v155, v176')
        s.rows_to_quad(176,177,232)
        a('s_and_b64 exec, s[0:1], 15')
        a('buffer_store_dwordx4 v[232:235], v8, s[44:47], s57 offen sc1')
        a('s_mov_b64 exec, -1')
        s.ts(1)
        s.rnd1(155)
        a('s_mul_i32 s56, s78, 6144'); a(f's_add_u32 s56, s56, {WS_DF}'); a('s_lshl_b32 s57, s78, 3')
        s.gather_p4([(176+4*k,8+k//4,'s56',1024*(k%4)) for k in range(6)],1)
        s.ts(2)
        for (x,y) in ((0,1),(2,3),(4,5),(0,2),(0,4)):
            for h in (0,2): a(f'v_pk_add_f32 v[{176+4*x+h}:{177+4*x+h}], v[{176+4*x+h}:{177+4*x+h}], v[{176+4*y+h}:{177+4*y+h}]')
        s.red16_quad(176)
        s.rnd1(176); a('v_mul_f32 v176, v153, v176'); s.rnd1(176); a('v_add_f32 v176, v155, v176')
        s.rows_to_quad(176,177,178)
        a('s_and_b64 exec, s[0:1], 15')
        a('buffer_store_dwordx2 v[178:179], v11, s[12:15], s57 offen')
        a('s_cmp_lg_u32 s78, 0'); a('s_cbranch_scc1 L_auxend')
        a('s_and_b64 exec, s[0:1], 1')
        a('buffer_store_dword v234, v8, s[44:47], 0 offen')
        a('L_auxend:')
        s.redo('L_tail')
        a('L_gprep:')
        s.lds_wait(F_G,'ge',3,8,vt=13)
        a('v_lshrrev_b32 v7, 2, v1'); a('v_lshlrev_b32 v6, 5, v7'); a('v_lshl_add_u32 v6, v15, 3, v6')
        a('s_lshl_b32 s7, s3, 11'); a(f's_add_u32 s7, s7, {L_U0}'); a('v_add_u32 v6, s7, v6')
        for i in range(3):
            for sb in range(4):
                a(f'ds_read_b64_tr_b16 v[{80+8*i+2*sb}:{81+8*i+2*sb}], v6 offset:{8192*i+512*sb}')
                a(f'ds_read_b64_tr_b16 v[{104+8*i+2*sb}:{105+8*i+2*sb}], v6 offset:{8192*i+512*sb+(L_U1-L_U0)}')
        a('v_mul_u32_u24 v7, 1280, v7'); a('v_lshl_add_u32 v7, v15, 3, v7')
        a('s_lshl_b32 s7, s3, 7'); a(f's_add_u32 s7, s7, {L_U2}'); a('v_add_u32 v7, s7, v7')
        for i in range(3):
            for sb in range(4): a(f'ds_read_b64_tr_b16 v[{128+8*i+2*sb}:{129+8*i+2*sb}], v7 offset:{512*i+32*sb}')
        a('v_and_b32 v11, 12, v2'); a('v_add_u32 v11, v11, v3'); a('v_lshlrev_b32 v8, 6, v11'); a('v_lshl_add_u32 v8, v15, 4, v8')
        a('s_lshl_b32 s7, s3, 10'); a('v_add_u32 v8, s7, v8')
        a('s_cmp_lt_u32 s3, 2'); a('s_cselect_b32 s7, 2, 1'); a('s_lshl_b32 s7, s7, 12'); a('v_add_u32 v9, 4096, v8'); a('v_add_u32 v10, s7, v8')
        a(f's_mov_b32 s56, {WS_MOD+M_SB}'); a(f's_mov_b32 s57, {WS_MOD+M_CB}')
        s.gather_masked([(176+4*i,3,8+i,'s56',0) for i in range(3)]+[(188+4*i,3,8+i,'s57',0) for i in range(3)],2,(1<<64)-1,8)
        for i in range(3):
            s.unpack(176+4*i,164+4*i,165+4*i); s.unpack(177+4*i,166+4*i,167+4*i)
            s.one_plus(188+4*i,189+4*i,152+4*i)
        a('v_lshrrev_b32 v7, 2, v2')
        for sb in range(4):
            a(f'v_cmp_eq_u32 vcc, {sb}, v7'); a(f'v_cndmask_b32 v{248+sb}, 0, -1, vcc')
        a('v_mul_u32_u24 v11, 6144, v11'); a('v_lshl_add_u32 v11, v15, 4, v11')
        a('v_lshlrev_b32 v4, 4, v1')
        a(f'v_lshlrev_b32 v6, 3, v15'); a(f'v_add_u32 v6, {L_ST}, v6'); a('s_lshl_b32 s7, s3, 5'); a('v_lshl_add_u32 v5, v3, 2, v6'); a('v_add_u32 v5, s7, v5')
        a('v_lshlrev_b32 v7, 6, v3'); a('v_lshl_add_u32 v7, v15, 4, v7'); a(f'v_add_u32 v7, {L_GR}, v7'); a('s_lshl_b32 s7, s3, 8'); a('v_add_u32 v252, s7, v7')
        a('s_mul_i32 s48, s3, 98304'); a('s_lshl_b32 s7, s78, 6'); a('s_add_u32 s48, s48, s7'); a(f's_add_u32 s48, s48, {WS_DF}')
        a('s_add_u32 s49, s48, 393216'); a('s_add_u32 s50, s48, 786432')
        s.p4_consts()
        k0=0.7978845608028654; c0=-2*k0*LOG2E; c1=c0*0.044715
        a(f's_mov_b32 s51, {fhex(c1)}'); a(f'v_mov_b32 v253, {fhex(c0)}')
        a('s_waitcnt lgkmcnt(0)')
        a('L_G:')
        a(f's_mov_b32 s56, {WS_WR}'); a(f's_mov_b32 s57, {WS_X1}')
        s.ts(5)
        s.lds_wait(F_CNT,'ge',4,4,vt=13,dry=True)
        s.ts(6)
        s.gather_p4([(176,4,'s56',0),(180,4,'s56',1024)],2)
        s.ts(7)
        s.gather_full([(176+4*i,3,8+i,'s57',0) for i in range(3)],2,0,dry=True)
        s.ts(8)
        s.ln_sums([176,177,180,181],216)
        a('s_cmp_ge_u32 s3, 2'); a('s_cbranch_scc1 L_g1')
        s.ln_sums([184,185],216,first=False)
        a('L_g1:')
        a('s_nop 2')
        s.ln_red(216)
        a('s_mov_b64 exec, 0x000f000f')
        a('ds_write_b32 v5, v216')
        a('s_mov_b64 exec, -1')
        s.bar()
        s.ts(1)
        for w in range(4): a(f'ds_read_b64 v[{16+2*w}:{17+2*w}], v6 offset:{32*w}')
        a('s_waitcnt lgkmcnt(0)')
        a('v_pk_add_f32 v[16:17], v[16:17], v[18:19]'); a('v_pk_add_f32 v[20:21], v[20:21], v[22:23]')
        a('v_add_f32 v216, v16, v20'); a('v_add_f32 v218, v17, v21')
        nmu,rs=s.ln_fin(216)
        s.ts(2)
        for i in range(3):
            if i==2: a('s_cmp_ge_u32 s3, 2'); a('s_cbranch_scc1 L_g2')
            B0=188+8*(i&1)
            s.ln_apply(176+4*i,177+4*i,nmu,rs,152+4*i,164+4*i,B0,B0+1,228)
            for sb in range(1,4):
                for e in range(2): a(f'v_mov_b32_dpp v{B0+2*sb+e}, v{B0+e} row_shl:{4*sb} row_mask:0xf bank_mask:0xf')
            for sb in range(4):
                first=(i==0 and sb==0); B=B0+2*sb
                a(f'v_mfma_f32_16x16x16_bf16 v[16:19], v[{80+8*i+2*sb}:{81+8*i+2*sb}], v[{B}:{B+1}], {"0" if first else "v[16:19]"}')
                a(f'v_mfma_f32_16x16x16_bf16 v[20:23], v[{104+8*i+2*sb}:{105+8*i+2*sb}], v[{B}:{B+1}], {"0" if first else "v[20:23]"}')
        a('L_g2:')
        s.ts(3)
        a('s_mov_b32 exec_lo, 0x000f000f'); a('s_mov_b32 exec_hi, 0x000f000f')
        a('s_nop 5')
        a('ds_write_b128 v252, v[16:19]'); a('ds_write_b128 v252, v[20:23] offset:1024')
        a('s_mov_b64 exec, -1')
        s.bar()
        s.ts(4)
        for t in range(2):
            for w in range(4): a(f'ds_read_b128 v[{24+16*t+4*w}:{27+16*t+4*w}], v7 offset:{1024*t+256*w}')
        for t in range(2):
            a(f's_waitcnt lgkmcnt({4-4*t})')
            b=24+16*t
            for h in (0,2): a(f'v_pk_add_f32 v[{b+h}:{b+h+1}], v[{b+h}:{b+h+1}], v[{b+4+h}:{b+5+h}]'); a(f'v_pk_add_f32 v[{b+8+h}:{b+9+h}], v[{b+8+h}:{b+9+h}], v[{b+12+h}:{b+13+h}]')
            for h in (0,2): a(f'v_pk_add_f32 v[{b+h}:{b+h+1}], v[{b+h}:{b+h+1}], v[{b+8+h}:{b+9+h}]')
            if t==0:
                a('v_cvt_pk_bf16_f32 v28, v24, v25'); a('v_cvt_pk_bf16_f32 v29, v26, v27'); s.unpack(28,24,25); s.unpack(29,26,27)
                for r in range(4): a(f'v_mul_f32 v{32+r}, v{24+r}, v{24+r}')
                for r in range(4): a(f'v_fma_f32 v{32+r}, v{32+r}, s51, v253')
                for r in range(4): a(f'v_mul_f32 v{32+r}, v{32+r}, v{24+r}')
                for r in range(4): a(f'v_exp_f32 v{32+r}, v{32+r}')
        a('v_cvt_pk_bf16_f32 v30, v40, v41'); a('v_cvt_pk_bf16_f32 v31, v42, v43')
        for r in range(4): a(f'v_add_f32 v{32+r}, 1.0, v{32+r}')
        for r in range(4): a(f'v_rcp_f32 v{32+r}, v{32+r}')
        s.unpack(30,40,41); s.unpack(31,42,43)
        for r in range(4): a(f'v_mul_f32 v{24+r}, v{24+r}, v{32+r}')
        a('v_cvt_pk_bf16_f32 v28, v24, v25'); a('v_cvt_pk_bf16_f32 v29, v26, v27'); s.unpack(28,24,25); s.unpack(29,26,27)
        for h in (0,2): a(f'v_pk_mul_f32 v[{24+h}:{25+h}], v[{24+h}:{25+h}], v[{40+h}:{41+h}]')
        a('v_cvt_pk_bf16_f32 v28, v24, v25'); a('v_cvt_pk_bf16_f32 v29, v26, v27')
        for sb in range(4):
            a(f'v_and_b32 v{48+2*sb}, v{248+sb}, v28'); a(f'v_and_b32 v{49+2*sb}, v{248+sb}, v29')
        s.ts(9)
        for sb in range(4):
            for i in range(3):
                ac=56+4*i
                a(f'v_mfma_f32_16x16x16_bf16 v[{ac}:{ac+3}], v[{128+8*i+2*sb}:{129+8*i+2*sb}], v[{48+2*sb}:{49+2*sb}], {"0" if sb==0 else "v[%d:%d]"%(ac,ac+3)}')
        so=['s48','s49','s50']
        a('s_cmp_lt_u32 s3, 2'); a('s_cselect_b64 s[58:59], s[0:1], 0')
        for i in range(3): s.pack4(56+4*i)
        a('s_mov_b64 exec, s[0:1]')
        for i in range(3):
            if i==2: a('s_mov_b64 exec, s[58:59]')
            a(f'buffer_store_dwordx4 v[{56+4*i}:{59+4*i}], v11, s[44:47], {so[i]} offen sc1')
        s.redo('L_G')

    def build(s):
        a=s.a
        a(f'{NAME}_kernel:')
        s.ts(0)
        a('s_cmp_ge_u32 s2, 256'); a('s_cbranch_scc1 L_exit')
        a('s_load_dwordx16 s[16:31], s[0:1], 0'); a('s_load_dwordx8 s[32:39], s[0:1], 64'); a('s_load_dwordx4 s[40:43], s[0:1], 96')
        a('v_lshrrev_b32 v2, 6, v0'); a('v_and_b32 v1, 63, v0'); a('v_readfirstlane_b32 s3, v2')
        a(f'v_mov_b32 v14, {L_FL}')
        for i in range(4,8): a(f'v_mov_b32 v{i}, 0')
        a('s_cmp_lg_u32 s3, 0'); a('s_cbranch_scc1 L_nflag')
        a('ds_write_b128 v14, v[4:7]'); a('ds_write_b128 v14, v[4:7] offset:16')
        a('L_nflag:')
        a('s_lshr_b32 s5, s2, 3'); a('s_and_b32 s6, s2, 7')
        a(f's_mov_b32 s52, {TIMEOUT}'); a('s_mov_b32 s53, 0xffff0000'); a(f's_mov_b32 s54, {fhex(SCALE)}'); a(f's_mov_b32 s55, {fhex(LOG2E)}')
        a('s_mul_i32 s78, s5, 5'); a('s_add_u32 s78, s78, s6'); a('s_lshl_b32 s7, s6, 5'); a('s_add_u32 s7, s7, s5'); a('s_sub_u32 s7, s7, 160')
        a('s_cmp_ge_u32 s6, 5'); a('s_cselect_b32 s78, s7, s78')
        a('v_and_b32 v2, 15, v1'); a('v_lshrrev_b32 v3, 4, v1'); a(f'v_mov_b32 v11, {L_OP}')
        if s.TS:
            for i in range(1,11): a(f's_mov_b64 s[{80+2*i}:{81+2*i}], 0')
        a('s_waitcnt lgkmcnt(0)')
        a('s_load_dword s4, s[42:43], 0')
        a('s_mov_b32 s26, 0x3f803f80'); a('s_mov_b32 s27, 1'); a('s_mov_b64 s[0:1], -1')
        s.srd(44,42,None,WS_SIZE)
        a('s_barrier')
        a('s_cmp_lt_u32 s3, 4'); a('s_cbranch_scc1 L_stream')
        if s.so: a('s_endpgm')
        a('s_cmp_eq_u32 s3, 4'); a('s_cbranch_scc1 L_w4')
        a('s_cmp_lt_u32 s3, 7'); a('s_cbranch_scc1 L_w56')
        a('s_branch L_w7')
        a('L_timeout:')
        a('s_mov_b64 exec, -1')
        a('L_exit:')
        a('s_endpgm')
        s.stream(); s.wave4(); s.wave56(); s.wave7(); s.prep_and_tail()
        ref=open('cdna_kernels/'+NAME+'.s.ref').read().split('\n')
        head=[l for l in ref if l.startswith(';') and '@launch' not in l]
        out='\n'.join(head)+f'\n; @launch grid=(256,1,1) block=(512,1,1) lds={LDS_BYTES}\n'
        out+=f'.amdgcn_target "amdgcn-amd-amdhsa--gfx950"\n.text\n.globl {NAME}_kernel\n.p2align 8\n.type {NAME}_kernel,@function\n'
        out+=a.text()
        out+=f'''.section .rodata,"a"
.p2align 6
.amdhsa_kernel {NAME}_kernel
  .amdhsa_next_free_vgpr 256
  .amdhsa_next_free_sgpr 102
  .amdhsa_accum_offset 256
  .amdhsa_group_segment_fixed_size 0
  .amdhsa_kernarg_size 112
  .amdhsa_user_sgpr_count 2
  .amdhsa_user_sgpr_kernarg_segment_ptr 1
  .amdhsa_system_sgpr_workgroup_id_x 1
  .amdhsa_float_denorm_mode_32 3
.end_amdhsa_kernel
'''
        return out
if __name__=='__main__':
    import argparse
    p=argparse.ArgumentParser(); p.add_argument('-o',default='cdna_kernels/'+NAME+'.s'); p.add_argument('--ts',action='store_true'); p.add_argument('-D',type=int,default=6); p.add_argument('--daux',type=int,default=16); p.add_argument('--dg',type=int,default=2)
    p.add_argument('--kpol',default='nt'); p.add_argument('--vpol',default='nt'); p.add_argument('--wpol',default='nt'); p.add_argument('--gpol',default=''); p.add_argument('--nodry',action='store_true'); p.add_argument('--nobar2',action='store_true'); p.add_argument('--so',action='store_true'); p.add_argument('--gate',type=int,default=1); p.add_argument('--prog',type=int,default=3); p.add_argument('--dm',type=int,default=8); p.add_argument('--dd',type=int,default=8)
    x=p.parse_args()
    g=G(D=x.D,TS=x.ts,DAUX=x.daux,kpol=x.kpol,vpol=x.vpol,ntw=x.wpol,gpol=x.gpol,dry=not x.nodry); g.DG=x.dg; g.bar2=not x.nobar2; g.so=x.so; g.gate=x.gate; g.prog=x.prog; g.DM=x.dm; g.DD=x.dd
    open(x.o,'w').write(g.build()); print('pads',g.a.pads,'ins',len(g.a.L))
```

```python
import sys, struct
from asmlib import Asm
NAME='adaLN_cond__gqa_block_cached__geglu_ffn__decode'
def fhex(f): return '0x%08x'%struct.unpack('<I',struct.pack('<f',f))[0]
LOG2E=1.4426950408889634
SCALE=192**-0.5
WS_MOD=0x1000; WS_X1=0x10000; WS_GG=0x13000; WS_POOL=0x1A000; WS_OP=0x20000; WS_WR=0x60000; WS_QP=0x100000; WS_DF=0x280000; WS_TS=0x500000; WS_SIZE=0x600000
L_WQ=0x0; L_X=0x7800; L_U0=L_X; L_U1=L_X+20480; L_D=L_X+49152; L_SC=0x1F800; L_MR=0x20C00; L_OP=0x21400; L_GR=0x22C00; L_ST=0x23400; L_Q=0x23500; L_ML=0x23700; L_FL=0x23740; LDS_BYTES=0x23800
F_CNT=0; F_Q=4; F_WO=8; F_G=12; F_MOD=16; F_RING=20; F_PROG=24
M_GA=20480; M_SB=30720; M_CB=40960; M_GB=51200
TIMEOUT=1<<21

class G:
    def __init__(s, D=9, TS=False, DAUX=4, ntw='nt', kpol='nt', vpol='nt', gpol='', dry=True):
        s.gpol=gpol; s.dry=dry
        s.pol=(kpol,vpol)
        s.a=Asm(); s.D=D; s.TS=TS; s.DAUX=DAUX; s.ntw=ntw; s.uid=0
    def lab(s,p):
        s.uid+=1; return f'L_{p}_{s.uid}'
    def ts(s,i):
        if s.TS: s.a(f's_memrealtime s[{80+2*i}:{81+2*i}]')
    def ts_flush(s):
        a=s.a
        if not s.TS: return
        a('s_waitcnt lgkmcnt(0)')
        a('s_lshl_b32 s7, s2, 3'); a('s_add_u32 s7, s7, s3'); a('s_lshl_b32 s7, s7, 7'); a(f's_add_u32 s7, s7, {WS_TS}')
        a('s_mov_b64 exec, 1')
        a('v_mov_b32 v1, 0')
        for i in range(0,11):
            a(f'v_mov_b32 v2, s{80+2*i}'); a(f'v_mov_b32 v3, s{81+2*i}')
            a(f'buffer_store_dwordx2 v[2:3], v1, s[44:47], s7 offen offset:{8*i}')
        a('s_getreg_b32 s56, hwreg(HW_REG_XCC_ID)'); a('v_mov_b32 v2, s56')
        a('buffer_store_dword v2, v1, s[44:47], s7 offen offset:88')
    def end(s):
        s.ts(10); s.ts_flush(); s.a('s_endpgm')
    def srd(s, d, ptr, off_sgpr, size):
        a=s.a
        if off_sgpr is None:
            a(f's_mov_b32 s{d}, s{ptr}'); a(f's_mov_b32 s{d+1}, s{ptr+1}')
        else:
            a(f's_add_u32 s{d}, s{ptr}, s{off_sgpr}'); a(f's_addc_u32 s{d+1}, s{ptr+1}, 0')
        a(f's_mov_b32 s{d+2}, {size}'); a(f's_mov_b32 s{d+3}, 0x20000')
    def timeout(s, loop, sleep, dn=None):
        a=s.a
        if dn is not None and s.dry: a('s_cmp_eq_u32 s27, 0'); a(f's_cbranch_scc1 {dn}')
        a('s_sub_u32 s52, s52, 1'); a('s_cbranch_scc1 L_timeout')
        if sleep: a(f's_sleep {sleep}')
        a(f's_branch {loop}')
    def lds_wait(s, off, cmpop, val, sleep, vt=15, dry=False):
        a=s.a; lp=s.lab('lw'); dn=s.lab('lwd')
        a(f'{lp}:')
        a(f'ds_read_b32 v{vt}, v14 offset:{off}'); a('s_waitcnt lgkmcnt(0)')
        a(f'v_readfirstlane_b32 s7, v{vt}'); a(f's_cmp_{cmpop}_u32 s7, {val}'); a(f's_cbranch_scc1 {dn}')
        s.timeout(lp,sleep,dn if dry else None); a(f'{dn}:')
    def lds_inc(s, off):
        a=s.a
        a('s_mov_b64 exec, 1'); a('v_mov_b32 v15, 1'); a(f'ds_add_u32 v14, v15 offset:{off}'); a('s_mov_b64 exec, -1')
    def gather_masked(s, loads, tagpos, init, sleep, dry=False):
        a=s.a; lp=s.lab('gm'); dn=s.lab('gmd'); assert len(loads)<=9
        for k in range(len(loads)):
            ini=init[k] if isinstance(init,list) else init
            lo,hi=ini&0xffffffff, ini>>32
            a(f's_mov_b32 s{60+2*k}, 0x{lo:x}'); a(f's_mov_b32 s{61+2*k}, 0x{hi:x}')
        a(f'{lp}:')
        for k,(d,n,vo,so,im) in enumerate(loads):
            a(f's_mov_b64 exec, s[{60+2*k}:{61+2*k}]')
            a(f'buffer_load_dwordx{n} v[{d}:{d+n-1}], v{vo}, s[44:47], {so} offen offset:{im} sc1')
        for k,(d,n,vo,so,im) in enumerate(loads):
            a(f's_waitcnt vmcnt({len(loads)-1-k})')
            a(f's_mov_b64 exec, s[{60+2*k}:{61+2*k}]')
            a(f'v_cmp_ne_u32 s[{60+2*k}:{61+2*k}], s4, v{d+tagpos}')
        a('s_mov_b64 exec, -1')
        if len(loads)==1: a('s_or_b64 s[58:59], s[60:61], s[60:61]')
        else:
            a('s_or_b64 s[58:59], s[60:61], s[62:63]')
            for k in range(2,len(loads)): a(f's_or_b64 s[58:59], s[58:59], s[{60+2*k}:{61+2*k}]')
        a(f's_cbranch_scc0 {dn}')
        s.timeout(lp,sleep,dn if dry else None); a(f'{dn}:')
    def gather_full(s, loads, tagpos, sleep, t0=12, t1=13, dry=False):
        a=s.a; lp=s.lab('gf'); dn=s.lab('gfd')
        a(f'{lp}:')
        for k,(d,n,vo,so,im) in enumerate(loads):
            a(f'buffer_load_dwordx{n} v[{d}:{d+n-1}], v{vo}, s[44:47], {so} offen offset:{im} sc1')
        tg=[d+tagpos for (d,n,vo,so,im) in loads]; n=len(tg)
        a(f's_waitcnt vmcnt({n-2})')
        a(f'v_min_u32 v{t0}, v{tg[0]}, v{tg[1]}'); a(f'v_max_u32 v{t1}, v{tg[0]}, v{tg[1]}')
        k=2
        while k<n:
            if k+1<n:
                a(f's_waitcnt vmcnt({n-2-k})')
                a(f'v_min3_u32 v{t0}, v{t0}, v{tg[k]}, v{tg[k+1]}'); a(f'v_max3_u32 v{t1}, v{t1}, v{tg[k]}, v{tg[k+1]}'); k+=2
            else:
                a('s_waitcnt vmcnt(0)')
                a(f'v_min_u32 v{t0}, v{t0}, v{tg[k]}'); a(f'v_max_u32 v{t1}, v{t1}, v{tg[k]}'); k+=1
        a(f'v_cmp_ne_u32 s[58:59], s4, v{t0}'); a(f'v_cmp_ne_u32 vcc, s4, v{t1}')
        a('s_or_b64 s[58:59], s[58:59], vcc'); a(f's_cbranch_scc0 {dn}')
        s.timeout(lp,sleep,dn if dry else None); a(f'{dn}:')
    def gather_p4(s, loads, sleep, dry=True, fl='sc1'):
        a=s.a; lp=s.lab('gp'); dn=s.lab('gpd'); n=len(loads)
        a(f'{lp}:')
        for (d,vo,so,im) in loads:
            a(f'buffer_load_dwordx4 v[{d}:{d+3}], v{vo}, s[44:47], {so} offen offset:{im} {fl}')
        for k,(d,vo,so,im) in enumerate(loads):
            a(f's_waitcnt vmcnt({n-1-k})')
            a(f'v_perm_b32 v244, v{d+1}, v{d}, s62'); a(f'v_perm_b32 v245, v{d+3}, v{d+2}, s63')
            if k==0: a('v_bitop3_b32 v12, v244, v245, v234 bitop3:0x56')
            else:
                a('v_bitop3_b32 v13, v244, v245, v234 bitop3:0x56'); a('v_or_b32 v12, v12, v13')
        a('v_cmp_ne_u32 vcc, 0, v12'); a(f's_cbranch_vccz {dn}')
        s.timeout(lp,sleep,dn if dry else None); a(f'{dn}:')
        for (d,vo,so,im) in loads:
            for r in range(4): a(f'v_and_b32 v{d+r}, s61, v{d+r}')
    def pack4(s, d):
        for r in range(4): s.a(f'v_perm_b32 v{d+r}, v{d+r}, v234, s{64+r}')
    def p4_consts(s):
        a=s.a
        a('s_mov_b32 s61, 0xffffff00'); a('s_mov_b32 s62, 0x0c0c0400'); a('s_mov_b32 s63, 0x04000c0c')
        for r in range(4): a(f's_mov_b32 s{64+r}, 0x0706050{r}')
    def red16_quad(s, d):
        a=s.a
        for ro in (4,8):
            for r in range(4): a(f'v_add_f32_dpp v{d+r}, v{d+r}, v{d+r} row_ror:{ro} row_mask:0xf bank_mask:0xf')
        a(f'v_permlane16_swap_b32 v{d}, v{d+1}'); a(f'v_permlane16_swap_b32 v{d+2}, v{d+3}')
        a(f'v_add_f32 v{d}, v{d}, v{d+1}'); a(f'v_add_f32 v{d+2}, v{d+2}, v{d+3}')
        a(f'v_permlane32_swap_b32 v{d}, v{d+2}'); a(f'v_add_f32 v{d}, v{d}, v{d+2}')
    def rows_to_quad(s, x, t, o):
        a=s.a
        a(f'v_mov_b32 v{t}, v{x}'); a(f'v_permlane16_swap_b32 v{x}, v{t}'); a(f'v_cvt_pk_bf16_f32 v{o}, v{x}, v{t}')
        a(f'v_mov_b32 v{o+1}, v{o}'); a(f'v_permlane32_swap_b32 v{o}, v{o+1}')
    def dma(s, srd, voffs, n, sofn, lds, pace=None, pol=None):
        a=s.a; last=None
        for p in range(n):
            so=sofn(p)
            if pace is not None and p>=pace: a(f's_waitcnt vmcnt({pace-1})')
            a(f's_mov_b32 m0, {lds+p*1024}')
            if so!=last: a(f's_mov_b32 s57, {so}'); last=so
            a(f'buffer_load_dwordx4 v{voffs[p%len(voffs)]}, s[{srd}:{srd+3}], s57 offen {s.ntw if pol is None else pol} lds')
    def unpack(s, p, lo, hi):
        s.a(f'v_lshlrev_b32 v{lo}, 16, v{p}'); s.a(f'v_and_b32 v{hi}, s53, v{p}')
    def ln_sums(s, dw, t, first=True):
        a=s.a; S0,S1,Q0,Q1=t,t+1,t+2,t+3
        for i,d in enumerate(dw):
            S=(S0,S1)[i&1]; Q=(Q0,Q1)[i&1]; z=(first and i<2)
            a(f'v_dot2_f32_bf16 v{S}, v{d}, s26, {"0" if z else "v%d"%S}')
            a(f'v_dot2_f32_bf16 v{Q}, v{d}, v{d}, {"0" if z else "v%d"%Q}')
    def ln_red(s, t):
        a=s.a; S0,S1,Q0,Q1=t,t+1,t+2,t+3
        a(f'v_add_f32 v{S0}, v{S0}, v{S1}'); a(f'v_add_f32 v{Q0}, v{Q0}, v{Q1}')
        for r in (4,8):
            a(f'v_add_f32_dpp v{S0}, v{S0}, v{S0} row_ror:{r} row_mask:0xf bank_mask:0xf')
            a(f'v_add_f32_dpp v{Q0}, v{Q0}, v{Q0} row_ror:{r} row_mask:0xf bank_mask:0xf')
        a(f'v_permlane16_swap_b32 v{S0}, v{Q0}'); a(f'v_add_f32 v{S0}, v{S0}, v{Q0}')
        a(f'v_mov_b32 v{Q0}, v{S0}'); a(f'v_permlane32_swap_b32 v{S0}, v{Q0}'); a(f'v_add_f32 v{S0}, v{S0}, v{Q0}')
    def ln_fin(s, t):
        a=s.a; S0,S1,Q0,Q1=t,t+1,t+2,t+3
        nmu,rs=t+4,t+6
        a(f'v_mul_f32 v{S0}, {fhex(-1/640)}, v{S0}'); a(f'v_mul_f32 v{Q0}, {fhex(1/640)}, v{Q0}')
        a(f'v_fma_f32 v{Q0}, -v{S0}, v{S0}, v{Q0}'); a(f'v_max_f32 v{Q0}, 0, v{Q0}')
        a(f'v_cvt_pk_bf16_f32 v{S1}, v{S0}, v{Q0}'); s.unpack(S1,nmu,Q0)
        a(f'v_add_f32 v{Q0}, {fhex(1e-5)}, v{Q0}'); a(f'v_cvt_pk_bf16_f32 v{Q0}, v{Q0}, v{Q0}'); a(f'v_and_b32 v{Q0}, s53, v{Q0}')
        a(f'v_sqrt_f32 v{Q0}, v{Q0}'); a(f'v_cvt_pk_bf16_f32 v{Q0}, v{Q0}, v{Q0}'); a(f'v_and_b32 v{Q0}, s53, v{Q0}')
        a(f'v_rcp_f32 v{rs}, v{Q0}')
        return nmu,rs
    def ln_stats(s, dw, t):
        s.ln_sums(dw,t); s.ln_red(t)
        s.a(f'v_mov_b32 v{t+2}, v{t}'); s.a(f'v_permlane16_swap_b32 v{t}, v{t+2}')
        return s.ln_fin(t)
    def exec_live(s, lo, hi):
        a=s.a
        a(f's_mov_b32 exec_lo, 0x{lo:x}'); a(f's_mov_b32 exec_hi, 0x{hi:x}')
        if s.dry: a('s_and_b64 exec, exec, s[0:1]')
    def got_epoch(s):
        s.a('s_waitcnt lgkmcnt(0)'); s.a('s_add_u32 s4, s4, 1')
    def ln_apply(s, d0, d1, nmu, rs, c1, sh, o0, o1, x):
        a=s.a
        def rnd(last=False):
            a(f'v_cvt_pk_bf16_f32 v{o0}, v{x}, v{x+1}'); a(f'v_cvt_pk_bf16_f32 v{o1}, v{x+2}, v{x+3}')
            if not last: s.unpack(o0,x,x+1); s.unpack(o1,x+2,x+3)
        s.unpack(d0,x,x+1); s.unpack(d1,x+2,x+3)
        for h in (0,2): a(f'v_pk_add_f32 v[{x+h}:{x+h+1}], v[{x+h}:{x+h+1}], v[{nmu}:{nmu+1}] op_sel_hi:[1,0]')
        rnd()
        for h in (0,2): a(f'v_pk_mul_f32 v[{x+h}:{x+h+1}], v[{x+h}:{x+h+1}], v[{rs}:{rs+1}] op_sel_hi:[1,0]')
        rnd()
        for h in (0,2): a(f'v_pk_mul_f32 v[{x+h}:{x+h+1}], v[{x+h}:{x+h+1}], v[{c1+h}:{c1+h+1}]')
        rnd()
        for h in (0,2): a(f'v_pk_add_f32 v[{x+h}:{x+h+1}], v[{x+h}:{x+h+1}], v[{sh+h}:{sh+h+1}]')
        rnd(True)
    def one_plus(s, p0, p1, o):
        a=s.a
        s.unpack(p0,o,o+1); s.unpack(p1,o+2,o+3)
        for i in range(4): a(f'v_add_f32 v{o+i}, 1.0, v{o+i}')
        a(f'v_cvt_pk_bf16_f32 v{p0}, v{o}, v{o+1}'); a(f'v_cvt_pk_bf16_f32 v{p1}, v{o+2}, v{o+3}')
        s.unpack(p0,o,o+1); s.unpack(p1,o+2,o+3)
    def red8_pair(s, a0, a1, t):
        a=s.a
        a(f'v_add_f32_dpp v{a0}, v{a0}, v{a0} row_ror:8 row_mask:0xf bank_mask:0xf')
        a(f'v_add_f32_dpp v{a1}, v{a1}, v{a1} row_ror:8 row_mask:0xf bank_mask:0xf')
        a(f'v_permlane16_swap_b32 v{a0}, v{a1}'); a(f'v_add_f32 v{a0}, v{a0}, v{a1}')
        a(f'v_mov_b32 v{t}, v{a0}'); a(f'v_permlane32_swap_b32 v{a0}, v{t}'); a(f'v_add_f32 v{a0}, v{a0}, v{t}')
    def rnd1(s, r):
        s.a(f'v_cvt_pk_bf16_f32 v{r}, v{r}, v{r}'); s.a(f'v_and_b32 v{r}, s53, v{r}')

    def stream(s):
        a=s.a; D=s.D
        KB=64; VB=160; Q=16; ACC=28; SC=40; MK=48; AT=(52,56); vM=60; vL=61; vO=62
        NS=s.NS; PB=64*NS; sC=lambda g: f's{30+g}'
        sO=lambda g: f's{60+g}'; sB=lambda g: f's{68+g}'; sBn=lambda g: f's{16+g}'
        a('L_stream:')
        a('s_and_b32 s7, s6, 3'); a('s_lshl_b32 s7, s7, 5'); a('s_add_u32 s7, s7, s5')
        a('s_lshl_b32 s25, s7, 7'); a(f's_add_u32 s25, s25, {WS_POOL}'); a('s_add_u32 s28, s42, s25'); a('s_addc_u32 s29, s43, 0')
        a('s_mul_i32 s7, s7, 1572864')
        s.srd(8,18,7,1572864); s.srd(12,20,7,1572864)
        a('s_and_b32 s24, s6, 4'); a('s_add_u32 s24, s24, s3'); a(f's_mul_i32 s24, s24, {8*NS}')
        a(f'v_lshrrev_b32 v2, 3, v1'); a(f'v_mul_u32_u24 v{vO}, 384, v2'); a('v_and_b32 v3, 7, v1'); a(f'v_lshl_add_u32 v{vO}, v3, 4, v{vO}')
        a('s_mul_i32 s60, s24, 3072')
        for g in range(1,8): a(f's_add_u32 {sO(g)}, {sO(g-1)}, 3072')
        if s.bar2: a('s_barrier')
        def issue(kv, gi, pace=True):
            base=(KB,VB)[kv]+12*gi; srd=('s[8:11]','s[12:15]')[kv]
            for jj in range(3):
                if pace is True or (pace is not False and pace+jj>=D): a(f's_waitcnt vmcnt({D-1})')
                a(f'buffer_load_dwordx4 v[{base+4*jj}:{base+4*jj+3}], v{vO}, {srd}, {sO(gi)} offen offset:{jj*128} {s.pol[kv]}')
        def claim(g, ahead, wait=True):
            d=s.lab('cd'); e=s.lab('ce')
            if wait: a('s_waitcnt lgkmcnt(0)')
            a(f's_add_u32 {sC(g)}, s24, {g+8*(ahead-1)}')
            a(f's_cmp_lt_u32 s58, {NS-ahead}'); a(f's_cbranch_scc1 {e}')
            a(f's_mov_b32 {sC(g)}, 1'); a(f's_atomic_add {sC(g)}, s[28:29], 0x0 glc')
            a(f'{e}:')
        def use(g):
            if g==7: a('s_waitcnt lgkmcnt(0)')
            a(f's_add_u32 s7, {sC(g)}, {PB}'); a(f's_mul_i32 {sO(g)}, s7, 3072')
            a('s_cmp_lt_u32 s7, 512'); a(f's_cselect_b32 {sBn(g)}, 0, {fhex(-1e30)}')
            if g==0: a('s_cselect_b64 vcc, 0, -1')
        n=0
        for kv in (0,1):
            for gi in range(8):
                issue(kv,gi,pace=n); n+=3
                if n-3<D<=n:
                    s.got_epoch()
                    a('v_and_b32 v4, 1, v1'); a('v_cmp_eq_u32 vcc, 1, v4'); a('v_mov_b32 v5, 0xffff'); a('v_mov_b32 v6, s53')
                    a('v_cndmask_b32 v5, v5, v6, vcc'); a('v_lshrrev_b32 v4, 1, v3')
                    for w in range(4):
                        a(f'v_cmp_eq_u32 vcc, {w}, v4'); a(f'v_cndmask_b32 v{MK+w}, 0, v5, vcc')
                    for i in range(12): a(f'v_mov_b32 v{ACC+i}, 0')
                    a(f'v_mov_b32 v{vM}, {fhex(-1e30)}'); a(f'v_mov_b32 v{vL}, 0')
                    a(f's_sub_u32 s24, s24, {PB-8}')
                    for g in range(5): a(f's_add_u32 {sC(g)}, s24, {g}')
                    for g in range(0,8,2): a(f's_mov_b64 s[{68+g}:{69+g}], 0')
        s.ts(1)
        s.lds_inc(F_RING)
        if not s.so: s.lds_wait(F_Q,'lg',0,1)
        a(f'v_lshlrev_b32 v4, 4, v3'); a(f'v_add_u32 v4, {L_Q}, v4')
        for jj in range(3): a(f'ds_read_b128 v[{Q+4*jj}:{Q+4*jj+3}], v4 offset:{128*jj}')
        a('s_mov_b32 s58, 0')
        a('s_waitcnt lgkmcnt(0)')
        s.ts(2)
        a('L_sloop:')
        use(0)
        for g2 in range(0,8,2):
            for i in range(12):
                for gi in (g2,g2+1):
                    a(f'v_dot2_f32_bf16 v{SC+gi}, v{KB+12*gi+i}, v{Q+i}, {"0" if i==0 else "v%d"%(SC+gi)}')
            sk=s.lab('sk'); a(f's_cbranch_vccnz {sk}')
            for gi in (g2,g2+1):
                if gi: use(gi)
                issue(0,gi)
                if gi in (1,3,5): claim(5+gi//2,1)
                if gi==7: claim(0,2,wait=False)
            a(f'{sk}:')
        a('s_nop 2')
        for m in ('quad_perm:[1,0,3,2]','quad_perm:[2,3,0,1]','row_half_mirror'):
            for gi in range(8): a(f'v_add_f32_dpp v{SC+gi}, v{SC+gi}, v{SC+gi} {m} row_mask:0xf bank_mask:0xf')
        for g2 in range(0,8,2): a(f'v_cvt_pk_bf16_f32 v{4+g2//2}, v{SC+g2}, v{SC+g2+1}')
        for g2 in range(0,8,2): s.unpack(4+g2//2,SC+g2,SC+g2+1)
        for gi in range(8): a(f'v_mul_f32 v{SC+gi}, s54, v{SC+gi}')
        for g2 in range(0,8,2): a(f'v_cvt_pk_bf16_f32 v{4+g2//2}, v{SC+g2}, v{SC+g2+1}')
        for g2 in range(0,8,2): s.unpack(4+g2//2,SC+g2,SC+g2+1)
        for gi in range(8): a(f'v_add_f32 v{SC+gi}, {sB(gi)}, v{SC+gi}')
        a(f'v_max3_f32 v4, v{SC}, v{SC+1}, v{SC+2}'); a(f'v_max3_f32 v5, v{SC+3}, v{SC+4}, v{SC+5}')
        a(f'v_max3_f32 v4, v4, v{SC+6}, v{SC+7}'); a('v_max_f32 v4, v4, v5')
        a('v_max_f32_dpp v4, v4, v4 row_ror:8 row_mask:0xf bank_mask:0xf')
        a('v_mov_b32 v5, v4'); a('v_permlane16_swap_b32 v4, v5'); a('v_max_f32 v4, v4, v5')
        a('v_mov_b32 v5, v4'); a('v_permlane32_swap_b32 v4, v5'); a('v_max_f32 v4, v4, v5')
        a('v_mul_f32 v4, s55, v4'); a(f'v_max_f32 v4, v4, v{vM}')
        a(f'v_sub_f32 v5, v{vM}, v4'); a('v_exp_f32 v5, v5'); a(f'v_mov_b32 v{vM}, v4')
        for gi in range(8): a(f'v_fma_f32 v{SC+gi}, v{SC+gi}, s55, -v{vM}')
        for gi in range(8): a(f'v_exp_f32 v{SC+gi}, v{SC+gi}')
        for i in range(12): a(f'v_mul_f32 v{ACC+i}, v5, v{ACC+i}')
        a(f'v_mul_f32 v{vL}, v5, v{vL}')
        def mkA(gi):
            at=AT[gi&1]
            a(f'v_cvt_pk_bf16_f32 v6, v{SC+gi}, v{SC+gi}')
            for w in range(4): a(f'v_and_b32 v{at+w}, v6, v{MK+w}')
            a(f'v_add_f32 v{vL}, v{vL}, v{SC+gi}')
        mkA(0)
        for gi in range(8):
            if gi<7: mkA(gi+1)
            if 3*(7-gi)<D+2:
                sk=s.lab('nw'); a(f's_cbranch_vccz {sk}'); a(f's_waitcnt vmcnt({3*(7-gi)})'); a(f'{sk}:')
            at=AT[gi&1]
            for jj in range(3):
                b=VB+12*gi+4*jj
                a(f'v_mfma_f32_16x16x32_bf16 v[{ACC+4*jj}:{ACC+4*jj+3}], v[{at}:{at+3}], v[{b}:{b+3}], v[{ACC+4*jj}:{ACC+4*jj+3}]')
            sk=s.lab('sv'); a(f's_cbranch_vccnz {sk}'); issue(1,gi)
            if gi&1: claim(1+gi//2,2)
            a(f'{sk}:')
        if s.TS:
            for it,idx in ((0,5),(1,6),(2,7),(4,8),(6,9)):
                sk=s.lab('ts'); a(f's_cmp_lg_u32 s58, {it}'); a(f's_cbranch_scc1 {sk}'); s.ts(idx); a(f'{sk}:')
        for g in range(0,8,2): a(f's_mov_b64 s[{68+g}:{69+g}], s[{16+g}:{17+g}]')
        a('s_add_u32 s24, s24, 8')
        a('s_add_u32 s58, s58, 1'); a('v_mov_b32 v4, s58'); a(f'ds_write_b32 v14, v4 offset:{F_PROG}'); a('s_cbranch_vccz L_sloop')
        if s.TS: a('s_mov_b32 s86, s58'); a('s_mov_b32 s87, 0')
        s.ts(4)
        a('L_merge:')
        a(f'v_add_f32_dpp v{vL}, v{vL}, v{vL} row_ror:8 row_mask:0xf bank_mask:0xf')
        a('v_lshrrev_b32 v4, 5, v1'); a('s_lshl_b32 s7, s3, 1')
        a(f'v_mov_b32 v5, v{vL}'); a('v_add_u32 v8, s7, v4'); a('v_mul_u32_u24 v8, 768, v8')
        a(f'v_permlane16_swap_b32 v{vL}, v5'); a(f'v_add_f32 v{vL}, v{vL}, v5')
        a('v_lshl_add_u32 v8, v3, 5, v8'); a(f'v_mov_b32 v5, v{vL}'); a('v_and_b32 v9, 16, v1'); a('v_add3_u32 v8, v8, v9, v11')
        a(f'v_permlane32_swap_b32 v{vL}, v5'); a(f'v_add_f32 v13, v{vL}, v5')
        a(f'v_mov_b32 v12, v{vM}')
        a('s_lshl_b32 s7, s3, 3'); a(f's_add_u32 s7, s7, {L_ML}'); a('v_mov_b32 v5, s7'); a('v_mov_b32 v6, 1')
        s.exec_live(0x00ff00ff,0xff00ff00)
        for jj in range(3): a(f'ds_write_b128 v8, v[{ACC+4*jj}:{ACC+4*jj+3}] offset:{256*jj}')
        s.exec_live(1,0)
        a('ds_write_b64 v5, v[12:13]')
        a('s_waitcnt lgkmcnt(0)')
        a(f'ds_add_rtn_u32 v7, v14, v6 offset:{F_CNT}')
        a('s_mov_b64 exec, -1')
        a('v_mul_u32_u24 v4, 768, v4'); a('v_and_b32 v5, 31, v1'); a('v_mul_u32_u24 v8, 24, v5'); a('v_add3_u32 v4, v4, v8, v11')
        a(f'v_mov_b32 v9, {L_ML}')
        a('v_lshlrev_b32 v10, 4, v1')
        a('s_sub_u32 s7, 11, s6'); a('s_cmp_lt_u32 s6, 4'); a('s_cselect_b32 s7, s6, s7'); a('s_lshl_b32 s56, s5, 3'); a('s_add_u32 s56, s56, s7')
        a('s_lshl_b32 s56, s56, 10'); a(f's_add_u32 s56, s56, {WS_OP}')
        a('s_waitcnt lgkmcnt(0)')
        a('v_readfirstlane_b32 s7, v7'); a('s_cmp_lg_u32 s7, 3'); a('s_cbranch_scc1 L_notlast')
        a('L_merge2:')
        a('ds_read_b128 v[64:67], v9'); a('ds_read_b128 v[68:71], v9 offset:16')
        for w in range(4):
            for e in range(3): a(f'ds_read_b64 v[{72+6*w+2*e}:{73+6*w+2*e}], v4 offset:{1536*w+8*e}')
        a('s_waitcnt lgkmcnt(12)')
        a('v_max3_f32 v60, v64, v66, v68'); a('v_max_f32 v60, v60, v70')
        for w in range(4): a(f'v_sub_f32 v{64+2*w}, v{64+2*w}, v60')
        for w in range(4): a(f'v_exp_f32 v{64+2*w}, v{64+2*w}')
        a('v_mul_f32 v61, v64, v65')
        for w in range(1,4): a(f'v_fmac_f32 v61, v{64+2*w}, v{65+2*w}')
        a('v_rcp_f32 v62, v61')
        a('s_waitcnt lgkmcnt(0)')
        for e in range(6): a(f'v_mul_f32 v{72+e}, v64, v{72+e}')
        for w in range(1,4):
            for e in range(6): a(f'v_fmac_f32 v{72+e}, v{64+2*w}, v{72+6*w+e}')
        for e in (0,2,4): a(f'v_permlane32_swap_b32 v{72+e}, v{73+e}')
        for e in (0,2,4): a(f'v_add_f32 v{72+e}, v{72+e}, v{73+e}')
        for e in (0,2,4): a(f'v_mul_f32 v{72+e}, v62, v{72+e}')
        for e in (0,2,4): a(f'v_mov_b32 v{73+e}, v{72+e}')
        for e in (0,2,4): a(f'v_permlane32_swap_b32 v{72+e}, v{73+e}')
        for i,e in enumerate((0,2,4)): a(f'v_cvt_pk_bf16_f32 v{80+i}, v{72+e}, v{73+e}')
        a('v_mov_b32 v83, s4')
        a('s_mov_b32 exec_lo, 0'); a('s_mov_b32 exec_hi, 1')
        a('v_mov_b32 v80, v60'); a('v_mov_b32 v81, v61')
        s.exec_live(0xffffffff,1)
        a('buffer_store_dwordx4 v[80:83], v10, s[44:47], s56 offen sc1')
        a('s_mov_b64 exec, -1')
        if s.dry: a('s_cmp_eq_u32 s27, 0'); a('s_cbranch_scc1 L_w7_cont')
        a('L_send:')
        s.end()
        a('L_notlast:')
        if s.dry: a('s_cmp_eq_u32 s27, 0'); a('s_cbranch_scc1 L_merge2')
        a('s_branch L_send')

    def strip_voff(s, r, pitch):
        a=s.a
        a(f'v_lshrrev_b32 v{r}, 1, v1'); a(f's_mov_b32 s7, {pitch}'); a(f'v_mul_lo_u32 v{r}, v{r}, s7'); a(f'v_and_b32 v15, 1, v1'); a(f'v_lshl_add_u32 v{r}, v15, 4, v{r}')

    def wave4(s):
        a=s.a
        a('L_w4:')
        a('s_setprio 2')
        a('s_and_b32 s7, s6, 3'); a('s_lshl_b32 s7, s7, 5'); a('s_add_u32 s7, s7, s5'); a('s_lshl_b32 s7, s7, 7'); a(f's_add_u32 s7, s7, {WS_POOL}')
        a('s_cmp_lt_u32 s6, 4'); a('s_cselect_b64 exec, 1, 0')
        a('buffer_store_dword v4, off, s[44:47], s7 sc1')
        a('s_mov_b64 exec, -1')
        s.srd(12,16,None,5120)
        a('v_and_b32 v15, 3, v1'); a('v_mul_u32_u24 v9, 1280, v15'); a('v_lshrrev_b32 v10, 2, v1'); a('v_lshl_add_u32 v10, v10, 4, v9')
        for m in range(5): a(f'buffer_load_dwordx4 v[{16+4*m}:{19+4*m}], v10, s[12:15], 0 offen offset:{256*m}')
        a('v_and_b32 v11, 12, v2'); a('v_add_u32 v11, v11, v3'); a('v_lshl_add_u32 v9, v11, 3, v9'); a('s_mul_i32 s7, s6, 160')
        for m in range(2): a(f'buffer_load_dwordx2 v[{228+2*m}:{229+2*m}], v9, s[12:15], s7 offen offset:{128*m}')
        a('s_mul_i32 s7, s6, 983040'); a('s_mul_i32 s56, s5, 384'); a('s_add_u32 s7, s7, s56')
        s.srd(8,22,7,79*12288+384)
        for ph in range(3):
            a(f'v_add_u32 v4, {64*ph}, v1'); a('v_mul_u32_u24 v5, 2731, v4'); a('v_lshrrev_b32 v5, 16, v5')
            a('v_mul_u32_u24 v6, 24, v5'); a('v_sub_u32 v4, v4, v6'); a('v_mul_u32_u24 v5, 12288, v5'); a(f'v_lshl_add_u32 v{232+ph}, v4, 4, v5')
        s.dma(8,[232,233,234],30,lambda p:(p//3)*98304,L_WQ)
        if s.bar2: a('s_barrier')
        s.got_epoch()
        a('v_lshlrev_b32 v8, 6, v11'); a('v_lshl_add_u32 v8, v15, 4, v8')
        a('v_lshrrev_b32 v7, 2, v1'); a('v_mul_u32_u24 v7, 384, v7'); a('v_lshl_add_u32 v7, v15, 3, v7')
        if L_WQ: a(f'v_add_u32 v7, {L_WQ}, v7')
        for nt in range(12): a(f'v_mov_b32 v{160+6*nt}, s4')
        a('s_waitcnt vmcnt(30)')
        nmu,rs=s.ln_stats([16+i for i in range(20)],240)
        a('s_waitcnt vmcnt(0)')
        s.ts(1)
        for kb in range(5):
            for nt in range(12): a(f'ds_read_b64_tr_b16 v[{16+2*(12*kb+nt)}:{17+2*(12*kb+nt)}], v7 offset:{6144*kb+32*nt}')
        a('s_mul_i32 s56, s6, 1280'); a(f's_add_u32 s56, s56, {WS_MOD}'); a('s_add_u32 s57, s56, 10240')
        full=(1<<64)-1; q4=0x000f000f000f000f
        s.gather_masked([(136,3,8,'s56',0),(140,3,8,'s57',0),(144,3,8,'s56',1024),(148,3,8,'s57',1024)],2,[full,full,q4,q4],1)
        s.ts(2)
        for m in range(2):
            sa,ca=136+8*m,140+8*m
            s.unpack(sa,232,233); s.unpack(sa+1,234,235)
            s.one_plus(ca,ca+1,236)
            s.ln_apply(228+2*m,229+2*m,nmu,rs,236,232,152+2*m,153+2*m,248)
        Bf={0:152,4:154}
        for sb in range(1,4):
            Bf[sb]=136+2*sb
            for e in range(2): a(f'v_mov_b32_dpp v{136+2*sb+e}, v{152+e} row_shl:{4*sb} row_mask:0xf bank_mask:0xf')
        a('s_waitcnt lgkmcnt(0)')
        for kb in (0,4,1,2,3):
            for nt in range(12):
                ac=156+6*nt; f=16+2*(12*kb+nt)
                a(f'v_mfma_f32_16x16x16_bf16 v[{ac}:{ac+3}], v[{f}:{f+1}], v[{Bf[kb]}:{Bf[kb]+1}], {"0" if kb==0 else "v[%d:%d]"%(ac,ac+3)}')
        a('v_mul_u32_u24 v9, 12288, v2'); a('v_lshl_add_u32 v9, v3, 4, v9')
        a('s_mul_i32 s56, s5, 49152'); a('s_mul_i32 s7, s6, 1536'); a('s_add_u32 s56, s56, s7'); a(f's_add_u32 s56, s56, {WS_QP}')
        a('s_mov_b32 exec_lo, 0x000f000f'); a('s_mov_b32 exec_hi, 0x000f000f')
        for nt in range(12):
            ac=156+6*nt
            a(f'buffer_store_dwordx3 v[{ac+2}:{ac+4}], v9, s[44:47], s56 offen offset:{768+64*nt} sc1')
        for nt in range(12): a(f'v_mov_b32 v{156+6*nt+2}, s4')
        for nt in range(12):
            ac=156+6*nt
            a(f'buffer_store_dwordx3 v[{ac}:{ac+2}], v9, s[44:47], s56 offen offset:{64*nt} sc1')
        s.ts(3)
        a('s_and_b32 s7, s6, 3'); a('s_lshl_b32 s56, s5, 2'); a('s_add_u32 s7, s7, s56'); a('s_mul_i32 s56, s7, 12288'); a(f's_add_u32 s56, s56, {WS_QP}')
        a('s_mov_b64 exec, -1')
        a('v_lshlrev_b32 v8, 4, v1')
        for i in range(1,4): a(f'v_add_u32 v{8+i}, {3072*i}, v8')
        a('s_mov_b32 exec_hi, 0xffff')
        loads=[(16+4*(2*p+rp),3,8+p//2,'s56',(p&1)*1536+rp*768) for p in range(8) for rp in range(2)]
        s.gather_full(loads,2,1)
        for p in range(1,8):
            for rp in range(2):
                for e in range(2): a(f'v_add_f32 v{16+4*rp+e}, v{16+4*rp+e}, v{16+4*(2*p+rp)+e}')
        a('v_cvt_pk_bf16_f32 v24, v16, v17'); a('v_cvt_pk_bf16_f32 v25, v20, v21')
        a('v_lshlrev_b32 v8, 3, v1'); a(f'v_add_u32 v8, {L_Q}, v8')
        a('ds_write_b64 v8, v[24:25]'); a('s_waitcnt lgkmcnt(0)')
        s.lds_inc(F_Q)
        s.ts(4)
        a('s_branch L_prep')

    def wave56(s):
        a=s.a
        a('L_w56:')
        a('s_sub_u32 s58, s3, 5')
        a('s_cmp_ge_u32 s6, 5'); a('s_cbranch_scc1 L_w56g')
        a('s_cmp_eq_u32 s77, -1'); a('s_cbranch_scc1 L_w56n')
        a('s_setprio 3')
        a('s_mov_b64 vcc, 0')
        a('s_cmp_lt_u32 s77, 20'); a('s_cbranch_scc1 L_w56c')
        if s.bar2: a('s_barrier')
        a('s_setprio 0')
        if s.gate: s.lds_wait(F_RING,'ge',s.gate,4)
        a('s_mov_b64 vcc, -1')
        a('L_w56c:')
        s.srd(48,34,None,5120)
        a('v_and_b32 v15, 3, v1'); a('v_mul_u32_u24 v9, 1280, v15'); a('v_lshrrev_b32 v10, 2, v1'); a('v_lshl_add_u32 v9, v10, 4, v9')
        a('s_mul_i32 s7, s58, 640')
        for i in range(3): a(f'buffer_load_dwordx4 v[{16+4*i}:{19+4*i}], v9, s[48:51], s7 offen offset:{256*i}')
        a('s_lshl_b32 s7, s77, 7')
        s.srd(8,36,7,639*7680+128)
        a('v_lshrrev_b32 v8, 3, v1'); a('v_mul_u32_u24 v8, 7680, v8'); a('v_and_b32 v11, 7, v1'); a('v_lshl_add_u32 v8, v11, 4, v8')
        a(f's_mul_i32 s57, s58, {320*7680}'); a('s_mul_i32 s56, s58, 40960'); a(f's_add_u32 s56, s56, {L_X}'); a('s_mov_b32 m0, s56')
        for p in range(40):
            if p>=s.DM:
                sk=s.lab('np'); a(f's_cbranch_vccz {sk}'); a(f's_waitcnt vmcnt({s.DM-1})'); a(f'{sk}:')
            a(f'buffer_load_dwordx4 v8, s[8:11], s57 offen {s.ntw} lds')
            if p<39: a('s_add_u32 m0, m0, 1024'); a('s_add_u32 s57, s57, 61440')
        if s.bar2:
            sk=s.lab('nb'); a(f's_cbranch_vccnz {sk}'); a('s_barrier'); a(f'{sk}:')
        s.got_epoch()
        a('s_mul_i32 s7, s58, 2560'); a(f's_add_u32 s7, s7, {L_SC}')
        a('v_mul_u32_u24 v9, 640, v15'); a('v_add_u32 v9, s7, v9'); a('v_lshl_add_u32 v5, v10, 4, v9'); a('v_lshl_add_u32 v6, v3, 4, v9')
        a('v_lshrrev_b32 v7, 2, v2'); a('v_lshl_add_u32 v7, v3, 3, v7'); a('v_lshlrev_b32 v7, 7, v7'); a('v_lshl_add_u32 v7, v15, 3, v7'); a('v_add_u32 v7, s56, v7')
        a('s_waitcnt vmcnt(40)')
        s.ts(1)
        T=216
        for m in range(3):
            for i in range(4): s.unpack(16+4*m+i,T+2*i,T+2*i+1)
            for i in range(8): a(f'v_mul_f32 v{T+8+i}, {fhex(-LOG2E)}, v{T+i}')
            for i in range(8): a(f'v_exp_f32 v{T+8+i}, v{T+8+i}')
            for i in range(8): a(f'v_add_f32 v{T+8+i}, 1.0, v{T+8+i}')
            for i in range(8): a(f'v_rcp_f32 v{T+8+i}, v{T+8+i}')
            for i in range(8): a(f'v_mul_f32 v{T+i}, v{T+i}, v{T+8+i}')
            for i in range(4): a(f'v_cvt_pk_bf16_f32 v{16+4*m+i}, v{T+2*i}, v{T+2*i+1}')
            if m==2: a('s_mov_b32 exec_hi, 0')
            a(f'ds_write_b128 v5, v[{16+4*m}:{19+4*m}] offset:{256*m}')
        a('s_mov_b64 exec, -1')
        a('s_waitcnt lgkmcnt(0)')
        for kb in range(10): a(f'ds_read_b128 v[{32+4*kb}:{35+4*kb}], v6 offset:{64*kb}')
        s.ts(2)
        for c in range(5):
            a(f's_waitcnt vmcnt({32-8*c})')
            F=72+32*(c&1)
            for k2 in range(2):
                for nt in range(4):
                    f=F+16*k2+4*nt; off=4096*(2*c+k2)+32*nt
                    a(f'ds_read_b64_tr_b16 v[{f}:{f+1}], v7 offset:{off}'); a(f'ds_read_b64_tr_b16 v[{f+2}:{f+3}], v7 offset:{off+512}')
            for k2 in range(2):
                a(f's_waitcnt lgkmcnt({8-8*k2})')
                kb=2*c+k2
                for nt in range(4):
                    f=F+16*k2+4*nt; ac=136+4*nt
                    a(f'v_mfma_f32_16x16x32_bf16 v[{ac}:{ac+3}], v[{f}:{f+3}], v[{32+4*kb}:{35+4*kb}], {"0" if kb==0 else "v[%d:%d]"%(ac,ac+3)}')
        s.ts(3)
        a('v_lshlrev_b32 v8, 4, v1'); a('s_lshl_b32 s7, s58, 10'); a(f's_add_u32 s7, s7, {L_MR}'); a('v_add_u32 v9, s7, v8')
        a('s_xor_b32 s7, s58, 1'); a('s_lshl_b32 s7, s7, 10'); a(f's_add_u32 s7, s7, {L_MR}'); a('v_add_u32 v10, s7, v8')
        a('v_mov_b32 v11, 1')
        for sb in range(1,4):
            m=0xf<<(4*sb); m|=m<<16
            a(f's_mov_b32 exec_lo, 0x{m:x}'); a(f's_mov_b32 exec_hi, 0x{m:x}')
            for r in range(4): a(f'v_mov_b32 v{136+r}, v{136+4*sb+r}')
        a('s_mov_b64 exec, -1')
        a('ds_write_b128 v9, v[136:139]'); a('s_waitcnt lgkmcnt(0)')
        a('s_mov_b64 exec, 1'); a(f'ds_add_rtn_u32 v11, v14, v11 offset:{F_MOD}'); a('s_mov_b64 exec, -1')
        a('v_and_b32 v8, 12, v2'); a('v_add_u32 v8, v8, v3'); a('v_lshlrev_b32 v8, 6, v8'); a('v_lshl_add_u32 v8, v15, 4, v8')
        a('s_lshl_b32 s56, s77, 10'); a(f's_add_u32 s56, s56, {WS_MOD}'); a('v_mov_b32 v146, s4')
        a('s_waitcnt lgkmcnt(0)')
        a('v_readfirstlane_b32 s7, v11'); a('s_cmp_eq_u32 s7, 0'); a('s_cbranch_scc1 L_prep')
        a('ds_read_b128 v[140:143], v10'); a('s_waitcnt lgkmcnt(0)')
        for r in range(4): a(f'v_add_f32 v{136+r}, v{136+r}, v{140+r}')
        a('v_cvt_pk_bf16_f32 v144, v136, v137'); a('v_cvt_pk_bf16_f32 v145, v138, v139')
        a('buffer_store_dwordx4 v[144:147], v8, s[44:47], s56 offen sc1')
        s.ts(4)
        a('s_branch L_prep')
        a('L_w56n:')
        if s.bar2: a('s_barrier')
        s.got_epoch()
        a('s_cmp_eq_u32 s79, -1'); a('s_cbranch_scc1 L_prep')
        a('s_lshl_b32 s7, s79, 3')
        s.srd(8,32,7,1535*1280+32)
        s.strip_voff(8,1280)
        if s.gate: s.lds_wait(F_RING,'ge',s.gate,4)
        a('s_mul_i32 s56, s58, 24576'); a(f's_add_u32 s56, s56, {L_D}'); a('s_mov_b32 m0, s56'); a(f's_mul_i32 s57, s58, {768*1280}')
        for p in range(24):
            if p>=s.DG: a(f's_waitcnt vmcnt({s.DG-1})')
            a(f'buffer_load_dwordx4 v8, s[8:11], s57 offen {s.gpol} lds')
            if p<23: a('s_add_u32 m0, m0, 1024'); a(f's_add_u32 s57, s57, {32*1280}')
        a('s_waitcnt vmcnt(0)')
        s.lds_inc(F_G)
        a('s_branch L_prep')
        a('L_w56g:')
        a('s_cmp_eq_u32 s58, 0'); a('s_cselect_b32 s8, s28, s30'); a('s_cselect_b32 s9, s29, s31')
        a('s_lshl_b32 s7, s78, 5'); a('s_add_u32 s8, s8, s7'); a('s_addc_u32 s9, s9, 0'); a(f's_mov_b32 s10, {639*3072+32}'); a('s_mov_b32 s11, 0x20000')
        s.strip_voff(8,3072)
        if s.bar2: a('s_barrier')
        s.got_epoch()
        if s.gate: s.lds_wait(F_RING,'ge',s.gate,4)
        a('s_mul_i32 s56, s58, 20480'); a(f's_add_u32 s56, s56, {L_U0}'); a('s_mov_b32 m0, s56'); a('s_mov_b32 s57, 0')
        for p in range(20):
            if p>=s.DG: a(f's_waitcnt vmcnt({s.DG-1})')
            a(f'buffer_load_dwordx4 v8, s[8:11], s57 offen {s.gpol} lds')
            if p<19: a('s_add_u32 m0, m0, 1024'); a(f's_add_u32 s57, s57, {32*3072}')
        a('s_waitcnt vmcnt(0)')
        s.lds_inc(F_G)
        a('s_branch L_prep')

    def wave7(s):
        a=s.a
        a('L_w7:')
        if s.bar2: a('s_barrier')
        s.got_epoch()
        if s.dry:
            a('s_mov_b32 s27, 0'); a('s_mov_b64 s[0:1], 0'); a('s_branch L_merge')
        a('L_w7_cont:')
        if s.gate: s.lds_wait(F_RING,'ge',s.gate,4)
        a('s_cmp_ge_u32 s6, 5'); a('s_cbranch_scc1 L_prep')
        a('s_cmp_eq_u32 s77, -1'); a('s_cbranch_scc1 L_w7w')
        s.lds_wait(F_MOD,'ge',2,4)
        a('L_w7w:')
        a('s_mul_i32 s7, s5, 245760'); a('s_lshl_b32 s56, s6, 8'); a('s_add_u32 s7, s7, s56')
        s.srd(8,24,7,191*1280+256)
        a('v_mul_u32_u24 v8, 1280, v3'); a('v_lshl_add_u32 v8, v2, 4, v8')
        s.dma(8,[8],48,lambda p:p*4*1280,L_X,pace=s.DAUX)
        a('s_waitcnt vmcnt(0)')
        s.lds_inc(F_WO)
        s.lds_wait(F_PROG,'ge',s.prog,16)
        s.srd(12,16,None,5120)
        a('v_and_b32 v15, 3, v1'); a('v_lshlrev_b32 v8, 4, v15')
        a('v_mul_u32_u24 v9, 1280, v15'); a('v_lshl_add_u32 v9, v3, 1, v9')
        a('s_lshl_b32 s7, s78, 3')
        a('buffer_load_ushort v154, v9, s[12:15], s7 offen')
        a('s_lshl_b32 s56, s78, 6'); a(f's_add_u32 s56, s56, {WS_MOD+M_GA}')
        s.gather_masked([(176,3,8,'s56',0)],2,(1<<64)-1,16)
        a('v_cmp_lt_u32 vcc, 31, v1')
        a('v_cndmask_b32 v176, v176, v177, vcc')
        a('v_lshlrev_b32 v154, 16, v154')
        s.unpack(176,152,177)
        a('v_and_b32 v11, 1, v3'); a('v_cmp_ne_u32 vcc, 0, v11')
        a('v_cndmask_b32 v152, v152, v177, vcc')

    def redo(s, lab):
        a=s.a; e=s.lab('e')
        a('s_mov_b64 exec, -1')
        if s.dry:
            a('s_cmp_lg_u32 s27, 0'); a(f's_cbranch_scc1 {e}')
            a('s_mov_b32 s27, 1'); a('s_mov_b64 s[0:1], -1'); a(f's_branch {lab}')
            a(f'{e}:')
        a('s_add_u32 s3, s3, 4')
        s.end()
    def bar(s):
        a=s.a; e=s.lab('b')
        if not s.dry:
            a('s_waitcnt lgkmcnt(0)'); a('s_barrier'); return
        a('s_cmp_eq_u32 s27, 0'); a('s_waitcnt lgkmcnt(0)'); a(f's_cbranch_scc1 {e}'); a('s_barrier'); a(f'{e}:')
    def prep_and_tail(s):
        a=s.a
        a('L_prep:')
        a('s_setprio 0')
        a('s_sub_u32 s3, s3, 4')
        if s.dry: a('s_mov_b32 s27, 0'); a('s_mov_b64 s[0:1], 0')
        else: a('s_mov_b32 s27, 1'); a('s_mov_b64 s[0:1], -1')
        a('v_and_b32 v2, 15, v1'); a('v_lshrrev_b32 v3, 4, v1'); a('v_and_b32 v15, 3, v1')
        s.lds_wait(F_PROG,'ge',s.prog,16,vt=13)
        a('v_mov_b32 v234, s4')
        a('s_cmp_ge_u32 s6, 5'); a('s_cbranch_scc1 L_gprep')
        s.lds_wait(F_WO,'lg',0,8,vt=13)
        a('v_lshrrev_b32 v7, 2, v2'); a('v_mul_u32_u24 v8, 6, v3'); a('v_add_u32 v7, v7, v8'); a('v_lshlrev_b32 v7, 8, v7')
        a('v_lshl_add_u32 v7, v15, 3, v7')
        a('s_lshl_b32 s7, s3, 6'); a(f's_add_u32 s7, s7, {L_X}'); a('v_add_u32 v7, s7, v7')
        for t in range(2):
            for kb in range(8):
                f=16+32*t+4*kb
                a(f'ds_read_b64_tr_b16 v[{f}:{f+1}], v7 offset:{6144*kb+32*t}')
                a(f'ds_read_b64_tr_b16 v[{f+2}:{f+3}], v7 offset:{6144*kb+32*t+1024}')
        a('v_lshlrev_b32 v4, 10, v2'); a('v_lshl_add_u32 v5, v3, 4, v4')
        a('v_lshlrev_b32 v6, 4, v2'); a('v_lshl_add_u32 v6, v3, 11, v6')
        a('v_lshlrev_b32 v8, 4, v1'); a('v_mov_b32 v9, 0'); a('v_mov_b32 v10, 0')
        a('s_cmp_eq_u32 s79, -1'); a('s_cbranch_scc1 L_nod')
        s.lds_wait(F_G,'ge',2,8,vt=13)
        a('v_lshrrev_b32 v7, 2, v1'); a('v_lshlrev_b32 v7, 5, v7'); a('v_lshl_add_u32 v7, v15, 3, v7')
        a('s_mul_i32 s7, s3, 12288'); a(f's_add_u32 s7, s7, {L_D}'); a('v_add_u32 v7, s7, v7')
        for p in range(3):
            for sb in range(4):
                for hf in range(2):
                    f=80+16*p+4*sb+2*hf
                    a(f'ds_read_b64_tr_b16 v[{f}:{f+1}], v7 offset:{2048*(2*p+hf)+512*sb}')
        a('v_and_b32 v9, 12, v2'); a('v_add_u32 v9, v9, v3'); a('v_lshlrev_b32 v9, 6, v9'); a('v_lshl_add_u32 v9, v15, 4, v9')
        a('s_mul_i32 s7, s3, 6144'); a('v_add_u32 v9, s7, v9'); a('v_add_u32 v10, 4096, v9')
        a('v_lshlrev_b32 v7, 6, v3'); a('v_lshl_add_u32 v7, v15, 4, v7')
        a('v_mul_u32_u24 v11, 1280, v15'); a('v_lshl_add_u32 v11, v3, 3, v11')
        a(f'v_add_u32 v250, {L_GR}, v7'); a('s_lshl_b32 s7, s3, 8'); a('v_add_u32 v251, s7, v250')
        a('s_lshl_b32 s56, s79, 6'); a(f's_add_u32 s56, s56, {WS_MOD+M_GB}')
        s.gather_masked([(176,3,7,'s56',0)],2,(1<<64)-1,16)
        s.unpack(176,156,157); s.unpack(177,158,159)
        s.srd(12,38,None,5120)
        a('L_nod:')
        a('s_waitcnt lgkmcnt(0)')
        for t in range(2):
            for kb in range(8): a(f'v_mov_b32 v{16+32*t+4*kb+3}, 0')
        a('L_tail:')
        a('s_lshl_b32 s56, s5, 13'); a(f's_add_u32 s56, s56, {WS_OP}')
        a('s_lshl_b32 s57, s6, 2'); a('s_add_u32 s57, s57, s3'); a('s_lshl_b32 s57, s57, 14'); a('s_lshl_b32 s7, s5, 6'); a('s_add_u32 s57, s57, s7'); a(f's_add_u32 s57, s57, {WS_WR}')
        a('s_add_u32 s50, s57, 8192')
        s.ts(5)
        if s.wake==0: s.lds_wait(F_CNT,'ge',4,4,vt=13,dry=True)
        elif s.wake==1: s.lds_wait(F_CNT,'ge',1,4,vt=13,dry=True)
        else: s.lds_wait(F_PROG,'ge',7,4,vt=13,dry=True)
        s.ts(6)
        s.gather_masked([(208,4,4,'s56',512)]+[(176+4*kb,4,5,'s56',64*kb) for kb in range(8)],3,0x00ff00ff00ff00ff,s.wsl,dry=True)
        s.ts(7)
        for kb in range(8): a(f'v_mov_b32 v{179+4*kb}, 0')
        s.p4_consts()
        for kb in range(8):
            for t in range(2):
                a(f'v_mfma_f32_16x16x32_bf16 v[{224+4*t}:{227+4*t}], v[{16+32*t+4*kb}:{19+32*t+4*kb}], v[{176+4*kb}:{179+4*kb}], {"0" if kb==0 else "v[%d:%d]"%(224+4*t,227+4*t)}')
            if kb==0:
                a('v_max_f32_dpp v212, v208, v208 row_half_mirror row_mask:0xf bank_mask:0xf')
                a('v_sub_f32 v212, v208, v212'); a('v_exp_f32 v212, v212')
            if kb==1: a('v_mul_f32 v212, v212, v209')
            if kb==2:
                a('v_add_f32_dpp v213, v212, v212 row_half_mirror row_mask:0xf bank_mask:0xf'); a('v_rcp_f32 v213, v213')
            if kb==3: a('v_mul_f32 v212, v212, v213')
        for r in range(8): a(f'v_mul_f32 v{224+r}, v212, v{224+r}')
        for r in range(8): a(f'v_add_f32_dpp v{224+r}, v{224+r}, v{224+r} row_half_mirror row_mask:0xf bank_mask:0xf')
        s.pack4(224); s.pack4(228)
        s.exec_live(0x000f000f,0x000f000f)
        a('buffer_store_dwordx4 v[224:227], v6, s[44:47], s57 offen sc1')
        a('buffer_store_dwordx4 v[228:231], v6, s[44:47], s50 offen sc1')
        a('s_mov_b64 exec, -1')
        s.ts(8)
        a('s_cmp_lg_u32 s3, 3'); a('s_cbranch_scc1 L_D')
        a('s_lshl_b32 s56, s78, 11'); a(f's_add_u32 s56, s56, {WS_WR}')
        a('s_lshl_b32 s57, s78, 6'); a(f's_add_u32 s57, s57, {WS_X1}')
        s.gather_p4([(176+4*k,8,'s56',1024*k) for k in range(2)],s.rsl)
        s.ts(9)
        for h in (0,2): a(f'v_pk_add_f32 v[{176+h}:{177+h}], v[{176+h}:{177+h}], v[{180+h}:{181+h}]')
        s.red16_quad(176)
        s.rnd1(176); a('v_mul_f32 v176, v152, v176'); s.rnd1(176); a('v_add_f32 v176, v154, v176')
        s.rows_to_quad(176,177,232)
        s.exec_live(15,0)
        a('buffer_store_dwordx4 v[232:235], v8, s[44:47], s57 offen sc1')
        a('s_mov_b64 exec, -1')
        s.ts(1)
        a('L_D:')
        a('s_cmp_eq_u32 s79, -1'); a('s_cbranch_scc1 L_auxend')
        a('s_lshl_b32 s56, s79, 6'); a(f's_add_u32 s56, s56, {WS_X1}'); a(f's_mov_b32 s57, {WS_GG}')
        s.gather_masked([(160,3,7,'s56',0)],2,(1<<64)-1,s.rsl,dry=True)
        s.unpack(160,164,165); s.unpack(161,166,167)
        a('s_lshl_b32 s56, s79, 3')
        if s.fdel: a(f's_sleep {s.fdel}')
        s.gather_full([(176+4*i,3,9+i//4,'s57',1024*(i%4)) for i in range(6)],2,s.fsl,dry=True)
        s.ts(2)
        n=0
        for p in range(3):
            for sb in range(4):
                B=200+4*(n%4); ac=224+4*(n&1)
                for hf in range(2):
                    for e in range(2):
                        src=176+4*(2*p+hf)+e
                        if sb==0: a(f'v_mov_b32 v{B+2*hf+e}, v{src}')
                        else: a(f'v_mov_b32_dpp v{B+2*hf+e}, v{src} row_shl:{4*sb} row_mask:0xf bank_mask:0xf')
                if n>=1:
                    pb,pac,pf=prev
                    a(f'v_mfma_f32_16x16x32_bf16 v[{pac}:{pac+3}], v[{pf}:{pf+3}], v[{pb}:{pb+3}], {"0" if n<=2 else "v[%d:%d]"%(pac,pac+3)}')
                prev=(B,ac,80+16*p+4*sb); n+=1
        pb,pac,pf=prev
        a(f'v_mfma_f32_16x16x32_bf16 v[{pac}:{pac+3}], v[{pf}:{pf+3}], v[{pb}:{pb+3}], v[{pac}:{pac+3}]')
        a('s_mov_b32 exec_lo, 0x000f000f'); a('s_mov_b32 exec_hi, 0x000f000f')
        for h in (0,2): a(f'v_pk_add_f32 v[{224+h}:{225+h}], v[{224+h}:{225+h}], v[{228+h}:{229+h}]')
        a('ds_write_b128 v251, v[224:227]')
        s.bar()
        a('s_cmp_lg_u32 s3, 0'); a('s_cbranch_scc1 L_auxend')
        for w in range(1,4): a(f'ds_read_b128 v[{176+4*w}:{179+4*w}], v250 offset:{256*w}')
        a('s_waitcnt lgkmcnt(1)')
        for h in (0,2): a(f'v_pk_add_f32 v[{224+h}:{225+h}], v[{224+h}:{225+h}], v[{180+h}:{181+h}]')
        a('s_waitcnt lgkmcnt(0)')
        for h in (0,2): a(f'v_pk_add_f32 v[{184+h}:{185+h}], v[{184+h}:{185+h}], v[{188+h}:{189+h}]')
        for h in (0,2): a(f'v_pk_add_f32 v[{224+h}:{225+h}], v[{224+h}:{225+h}], v[{184+h}:{185+h}]')
        def rnd4():
            a('v_cvt_pk_bf16_f32 v176, v224, v225'); a('v_cvt_pk_bf16_f32 v177, v226, v227')
        rnd4(); s.unpack(176,224,225); s.unpack(177,226,227)
        for h in (0,2): a(f'v_pk_mul_f32 v[{224+h}:{225+h}], v[{224+h}:{225+h}], v[{156+h}:{157+h}]')
        rnd4(); s.unpack(176,224,225); s.unpack(177,226,227)
        for h in (0,2): a(f'v_pk_add_f32 v[{224+h}:{225+h}], v[{224+h}:{225+h}], v[{164+h}:{165+h}]')
        if s.probe:
            a('v_cmp_eq_u32 vcc, 0, v1'); a('s_cmp_eq_u32 s79, 0'); a('s_cselect_b64 vcc, vcc, 0'); a(f'v_mov_b32 v176, {fhex(s.probe)}'); a('v_cndmask_b32 v176, 0, v176, vcc'); a('v_add_f32 v224, v224, v176')
        rnd4()
        if s.dry: a('s_and_b64 exec, exec, s[0:1]')
        a('buffer_store_dwordx2 v[176:177], v11, s[12:15], s56 offen')
        a('s_cmp_lg_u32 s79, 0'); a('s_cbranch_scc1 L_auxend')
        s.exec_live(1,0)
        a('buffer_store_dword v234, v8, s[44:47], 0 offen')
        a('L_auxend:')
        s.redo('L_tail')
        a('L_gprep:')
        s.lds_wait(F_G,'ge',2,8,vt=13)
        a('v_lshrrev_b32 v7, 2, v1'); a('v_lshlrev_b32 v6, 5, v7'); a('v_lshl_add_u32 v6, v15, 3, v6')
        a('s_lshl_b32 s7, s3, 11'); a(f's_add_u32 s7, s7, {L_U0}'); a('v_add_u32 v6, s7, v6')
        for i in range(3):
            for sb in range(4):
                a(f'ds_read_b64_tr_b16 v[{80+8*i+2*sb}:{81+8*i+2*sb}], v6 offset:{8192*i+512*sb}')
                a(f'ds_read_b64_tr_b16 v[{104+8*i+2*sb}:{105+8*i+2*sb}], v6 offset:{8192*i+512*sb+(L_U1-L_U0)}')
        a('v_and_b32 v11, 12, v2'); a('v_add_u32 v11, v11, v3'); a('v_lshlrev_b32 v8, 6, v11'); a('v_lshl_add_u32 v8, v15, 4, v8')
        a('s_lshl_b32 s7, s3, 10'); a('v_add_u32 v8, s7, v8')
        a('s_cmp_lt_u32 s3, 2'); a('s_cselect_b32 s7, 2, 1'); a('s_lshl_b32 s7, s7, 12'); a('v_add_u32 v9, 4096, v8'); a('v_add_u32 v10, s7, v8')
        a(f's_mov_b32 s56, {WS_MOD+M_SB}'); a(f's_mov_b32 s57, {WS_MOD+M_CB}')
        s.gather_masked([(176+4*i,3,8+i,'s56',0) for i in range(3)]+[(188+4*i,3,8+i,'s57',0) for i in range(3)],2,(1<<64)-1,8)
        for i in range(3):
            s.unpack(176+4*i,164+4*i,165+4*i); s.unpack(177+4*i,166+4*i,167+4*i)
            s.one_plus(188+4*i,189+4*i,152+4*i)
        a('v_lshlrev_b32 v4, 4, v1')
        a(f'v_lshlrev_b32 v6, 3, v15'); a(f'v_add_u32 v6, {L_ST}, v6'); a('s_lshl_b32 s7, s3, 5'); a('v_lshl_add_u32 v5, v3, 2, v6'); a('v_add_u32 v5, s7, v5')
        a('v_lshlrev_b32 v7, 6, v3'); a('v_lshl_add_u32 v7, v15, 4, v7'); a(f'v_add_u32 v7, {L_GR}, v7'); a('s_lshl_b32 s7, s3, 8'); a('v_add_u32 v252, s7, v7')
        a('s_lshl_b32 s48, s78, 8'); a(f's_add_u32 s48, s48, {WS_GG}'); a(f'v_subrev_u32 v11, {L_GR}, v7')
        s.p4_consts()
        k0=0.7978845608028654; c0=-2*k0*LOG2E; c1=c0*0.044715
        a(f's_mov_b32 s51, {fhex(c1)}'); a(f'v_mov_b32 v253, {fhex(c0)}')
        a('s_waitcnt lgkmcnt(0)')
        a('L_G:')
        a(f's_mov_b32 s56, {WS_WR}'); a(f's_mov_b32 s57, {WS_X1}')
        s.ts(5)
        s.lds_wait(F_CNT,'ge',4,4,vt=13,dry=True)
        s.ts(6)
        s.gather_p4([(176,4,'s56',0),(180,4,'s56',1024)],2)
        s.ts(7)
        s.gather_full([(176+4*i,3,8+i,'s57',0) for i in range(3)],2,0,dry=True)
        s.ts(8)
        s.ln_sums([176,177,180,181],216)
        a('s_cmp_ge_u32 s3, 2'); a('s_cbranch_scc1 L_g1')
        s.ln_sums([184,185],216,first=False)
        a('L_g1:')
        a('s_nop 2')
        s.ln_red(216)
        a('s_mov_b64 exec, 0x000f000f')
        a('ds_write_b32 v5, v216')
        a('s_mov_b64 exec, -1')
        s.bar()
        s.ts(1)
        for w in range(4): a(f'ds_read_b64 v[{16+2*w}:{17+2*w}], v6 offset:{32*w}')
        a('s_waitcnt lgkmcnt(0)')
        a('v_pk_add_f32 v[16:17], v[16:17], v[18:19]'); a('v_pk_add_f32 v[20:21], v[20:21], v[22:23]')
        a('v_add_f32 v216, v16, v20'); a('v_add_f32 v218, v17, v21')
        nmu,rs=s.ln_fin(216)
        s.ts(2)
        for i in range(3):
            if i==2: a('s_cmp_ge_u32 s3, 2'); a('s_cbranch_scc1 L_g2')
            B0=188+8*(i&1)
            s.ln_apply(176+4*i,177+4*i,nmu,rs,152+4*i,164+4*i,B0,B0+1,228)
            for sb in range(1,4):
                for e in range(2): a(f'v_mov_b32_dpp v{B0+2*sb+e}, v{B0+e} row_shl:{4*sb} row_mask:0xf bank_mask:0xf')
            for sb in range(4):
                first=(i==0 and sb==0); B=B0+2*sb
                a(f'v_mfma_f32_16x16x16_bf16 v[16:19], v[{80+8*i+2*sb}:{81+8*i+2*sb}], v[{B}:{B+1}], {"0" if first else "v[16:19]"}')
                a(f'v_mfma_f32_16x16x16_bf16 v[20:23], v[{104+8*i+2*sb}:{105+8*i+2*sb}], v[{B}:{B+1}], {"0" if first else "v[20:23]"}')
        a('L_g2:')
        s.ts(3)
        a('s_mov_b32 exec_lo, 0x000f000f'); a('s_mov_b32 exec_hi, 0x000f000f')
        a('s_nop 5')
        a('ds_write_b128 v252, v[16:19]'); a('ds_write_b128 v252, v[20:23] offset:1024')
        a('s_mov_b64 exec, -1')
        s.bar()
        s.ts(4)
        a('s_cmp_lg_u32 s3, 0'); a('s_cbranch_scc1 L_gend')
        for t in range(2):
            for w in range(4): a(f'ds_read_b128 v[{24+16*t+4*w}:{27+16*t+4*w}], v7 offset:{1024*t+256*w}')
        for t in range(2):
            a(f's_waitcnt lgkmcnt({4-4*t})')
            b=24+16*t
            for h in (0,2): a(f'v_pk_add_f32 v[{b+h}:{b+h+1}], v[{b+h}:{b+h+1}], v[{b+4+h}:{b+5+h}]'); a(f'v_pk_add_f32 v[{b+8+h}:{b+9+h}], v[{b+8+h}:{b+9+h}], v[{b+12+h}:{b+13+h}]')
            for h in (0,2): a(f'v_pk_add_f32 v[{b+h}:{b+h+1}], v[{b+h}:{b+h+1}], v[{b+8+h}:{b+9+h}]')
            if t==0:
                a('v_cvt_pk_bf16_f32 v28, v24, v25'); a('v_cvt_pk_bf16_f32 v29, v26, v27'); s.unpack(28,24,25); s.unpack(29,26,27)
                for r in range(4): a(f'v_mul_f32 v{32+r}, v{24+r}, v{24+r}')
                for r in range(4): a(f'v_fma_f32 v{32+r}, v{32+r}, s51, v253')
                for r in range(4): a(f'v_mul_f32 v{32+r}, v{32+r}, v{24+r}')
                for r in range(4): a(f'v_exp_f32 v{32+r}, v{32+r}')
        a('v_cvt_pk_bf16_f32 v44, v40, v41'); a('v_cvt_pk_bf16_f32 v45, v42, v43')
        for r in range(4): a(f'v_add_f32 v{32+r}, 1.0, v{32+r}')
        for r in range(4): a(f'v_rcp_f32 v{32+r}, v{32+r}')
        s.unpack(44,40,41); s.unpack(45,42,43)
        for r in range(4): a(f'v_mul_f32 v{24+r}, v{24+r}, v{32+r}')
        a('v_cvt_pk_bf16_f32 v28, v24, v25'); a('v_cvt_pk_bf16_f32 v29, v26, v27'); s.unpack(28,24,25); s.unpack(29,26,27)
        for h in (0,2): a(f'v_pk_mul_f32 v[{24+h}:{25+h}], v[{24+h}:{25+h}], v[{40+h}:{41+h}]')
        a('v_cvt_pk_bf16_f32 v28, v24, v25'); a('v_cvt_pk_bf16_f32 v29, v26, v27')
        a('v_mov_b32 v30, s4')
        s.exec_live(0x000f000f,0x000f000f)
        a('buffer_store_dwordx4 v[28:31], v11, s[44:47], s48 offen sc1')
        s.ts(9)
        a('L_gend:')
        s.redo('L_G')

    def build(s):
        a=s.a
        a(f'{NAME}_kernel:')
        s.ts(0)
        a('s_cmp_ge_u32 s2, 256'); a('s_cbranch_scc1 L_exit')
        a('s_load_dwordx16 s[16:31], s[0:1], 0'); a('s_load_dwordx8 s[32:39], s[0:1], 64'); a('s_load_dwordx4 s[40:43], s[0:1], 96')
        a('v_lshrrev_b32 v2, 6, v0'); a('v_and_b32 v1, 63, v0'); a('v_readfirstlane_b32 s3, v2')
        a(f'v_mov_b32 v14, {L_FL}')
        for i in range(4,8): a(f'v_mov_b32 v{i}, 0')
        a('s_cmp_lg_u32 s3, 0'); a('s_cbranch_scc1 L_nflag')
        a('ds_write_b128 v14, v[4:7]'); a('ds_write_b128 v14, v[4:7] offset:16')
        a('L_nflag:')
        a('s_lshr_b32 s5, s2, 3'); a('s_and_b32 s6, s2, 7')
        a(f's_mov_b32 s52, {TIMEOUT}'); a('s_mov_b32 s53, 0xffff0000'); a(f's_mov_b32 s54, {fhex(SCALE)}'); a(f's_mov_b32 s55, {fhex(LOG2E)}')
        a('s_mul_i32 s78, s5, 5'); a('s_add_u32 s78, s78, s6'); a('s_lshl_b32 s7, s6, 5'); a('s_add_u32 s7, s7, s5'); a('s_sub_u32 s7, s7, 160')
        a('s_cmp_ge_u32 s6, 5'); a('s_cselect_b32 s78, s7, s78')
        a('s_lshl_b32 s79, s6, 5'); a('s_add_u32 s79, s79, s5'); a('s_lshl_b32 s79, s79, 2'); a('s_cmp_lt_u32 s79, 160'); a('s_cselect_b32 s79, s79, -1')
        a('s_sub_u32 s56, s5, 8'); a('s_sub_u32 s7, s6, 1'); a('s_mul_i32 s77, s56, 3'); a('s_add_u32 s77, s77, s7')
        a('s_cmp_lt_u32 s56, 20'); a('s_cselect_b32 s77, s77, -1'); a('s_cmp_lt_u32 s7, 3'); a('s_cselect_b32 s77, s77, -1')
        a('v_and_b32 v2, 15, v1'); a('v_lshrrev_b32 v3, 4, v1'); a(f'v_mov_b32 v11, {L_OP}')
        if s.TS:
            for i in range(1,11): a(f's_mov_b64 s[{80+2*i}:{81+2*i}], 0')
        a('s_waitcnt lgkmcnt(0)')
        a('s_load_dword s4, s[42:43], 0')
        a('s_mov_b32 s26, 0x3f803f80'); a('s_mov_b32 s27, 1'); a('s_mov_b64 s[0:1], -1')
        s.srd(44,42,None,WS_SIZE)
        a('s_barrier')
        a('s_cmp_lt_u32 s3, 4'); a('s_cbranch_scc1 L_stream')
        if s.so: a('s_endpgm')
        a('s_cmp_eq_u32 s3, 4'); a('s_cbranch_scc1 L_w4')
        a('s_cmp_lt_u32 s3, 7'); a('s_cbranch_scc1 L_w56')
        a('s_branch L_w7')
        a('L_timeout:')
        a('s_mov_b64 exec, -1')
        a('L_exit:')
        a('s_endpgm')
        s.stream(); s.wave4(); s.wave56(); s.wave7(); s.prep_and_tail()
        ref=open('cdna_kernels/'+NAME+'.s.ref').read().split('\n')
        head=[l for l in ref if l.startswith(';') and '@launch' not in l]
        out='\n'.join(head)+f'\n; @launch grid=(256,1,1) block=(512,1,1) lds={LDS_BYTES}\n'
        out+=f'.amdgcn_target "amdgcn-amd-amdhsa--gfx950"\n.text\n.globl {NAME}_kernel\n.p2align 8\n.type {NAME}_kernel,@function\n'
        out+=a.text()
        out+=f'''.section .rodata,"a"
.p2align 6
.amdhsa_kernel {NAME}_kernel
  .amdhsa_next_free_vgpr 256
  .amdhsa_next_free_sgpr 102
  .amdhsa_accum_offset 256
  .amdhsa_group_segment_fixed_size 0
  .amdhsa_kernarg_size 112
  .amdhsa_user_sgpr_count 2
  .amdhsa_user_sgpr_kernarg_segment_ptr 1
  .amdhsa_system_sgpr_workgroup_id_x 1
  .amdhsa_float_denorm_mode_32 3
.end_amdhsa_kernel
'''
        return out
if __name__=='__main__':
    import argparse
    p=argparse.ArgumentParser(); p.add_argument('-o',default='cdna_kernels/'+NAME+'.s'); p.add_argument('--ts',action='store_true'); p.add_argument('-D',type=int,default=6); p.add_argument('--daux',type=int,default=16); p.add_argument('--dg',type=int,default=2)
    p.add_argument('--kpol',default='nt'); p.add_argument('--vpol',default='nt'); p.add_argument('--wpol',default='nt'); p.add_argument('--gpol',default='nt'); p.add_argument('--dry',action='store_true'); p.add_argument('--nobar2',action='store_true'); p.add_argument('--wake',type=int,default=1); p.add_argument('--wsl',type=int,default=0); p.add_argument('--rsl',type=int,default=0); p.add_argument('--fsl',type=int,default=0); p.add_argument('--fdel',type=int,default=0); p.add_argument('--ffl',default='sc1'); p.add_argument('--ns',type=int,default=7); p.add_argument('--vclaim',default='0,2,4,6'); p.add_argument('--probe',type=float,default=0); p.add_argument('--so',action='store_true'); p.add_argument('--gate',type=int,default=1); p.add_argument('--prog',type=int,default=3); p.add_argument('--dm',type=int,default=8); p.add_argument('--dd',type=int,default=8)
    x=p.parse_args()
    g=G(D=x.D,TS=x.ts,DAUX=x.daux,kpol=x.kpol,vpol=x.vpol,ntw=x.wpol,gpol=x.gpol,dry=x.dry); g.DG=x.dg; g.bar2=not x.nobar2; g.so=x.so; g.probe=x.probe; g.NS=x.ns; g.vclaim=[int(t) for t in x.vclaim.split(',')]; g.wake=x.wake; g.wsl=x.wsl; g.rsl=x.rsl; g.fsl=x.fsl; g.fdel=x.fdel; g.ffl=x.ffl; g.gate=x.gate; g.prog=x.prog; g.DM=x.dm; g.DD=x.dd
    open(x.o,'w').write(g.build()); print('pads',g.a.pads,'ins',len(g.a.L))
```
